```python
import torch

def _softmax(x, axis=-1):
    return torch.softmax(x, dim=axis)
def _gelu(x):
    return torch.nn.functional.gelu(x, approximate="tanh")
def _silu(x):
    return torch.nn.functional.silu(x)
def _sigmoid(x):
    return torch.sigmoid(x)
def _layernorm(x, axis=-1, eps=1e-5):
    m = x.mean(dim=axis, keepdim=True)
    v = x.var(dim=axis, keepdim=True, unbiased=False)
    return (x - m) / torch.sqrt(v + eps)
def _scatter_add(tgt, idx, src, axis=0):
    return tgt.clone().index_add_(axis, idx, src)
def _segment_sum(src, seg, n):
    out = torch.zeros((n,) + src.shape[1:], dtype=src.dtype)
    return out.index_add_(0, seg, src)
def _pad(x, pw):
    flat = tuple(v for pair in reversed(pw) for v in pair)
    return torch.nn.functional.pad(x, flat)

kernel_name = 'gated_mix__sliding_block_cached__glu_gated_geglu__decode'

def setup_inputs():

    _w = (lambda a: (lambda t: t.to(torch.bfloat16) if t.is_floating_point() else t)(torch.as_tensor(a)))
    def _A_setup():
        B, Sq, D = 1, 1, 640
        Hq, Hkv, Sk, Dh = 32, 32, 4096, 192
        assert Hq % Hkv == 0, (Hq, Hkv)
        return {
            "x": _w((lambda *s: torch.randn(*s, dtype=torch.bfloat16) * 0.05)(B, Sq, D)),
            "k_cache": _w((lambda *s: torch.randn(*s, dtype=torch.bfloat16) * 6.4)(B, Hkv, Sk, Dh)),
            "v_cache": _w((lambda *s: torch.randn(*s, dtype=torch.bfloat16) * 0.05)(B, Hkv, Sk, Dh)),
            "wq": _w((lambda *s: torch.randn(*s, dtype=torch.bfloat16) * 6.4)(D, Hq * Dh) * (D ** -0.5)),
            "wo": _w((lambda *s: torch.randn(*s, dtype=torch.bfloat16) * 0.05)(Hq * Dh, D) * ((Hq * Dh) ** -0.5)),
        }
    _A_in = _A_setup()

    def _B_setup():
        B, S, Dm, Df = 1, 1, 640, 1536
        return {
            "x": _w((lambda *s: torch.randn(*s, dtype=torch.bfloat16) * 0.05)(B, S, Dm)),
            "w_gate": _w((lambda *s: torch.randn(*s, dtype=torch.bfloat16) * 0.8)(Dm, Df) * (Dm ** -0.5)),
            "w_up": _w((lambda *s: torch.randn(*s, dtype=torch.bfloat16) * 0.8)(Dm, Df) * (Dm ** -0.5)),
            "w_down": _w((lambda *s: torch.randn(*s, dtype=torch.bfloat16) * 0.8)(Df, Dm) * (Df ** -0.5)),
        }
    _B_in = _B_setup()

    return {
        "A_x": _A_in["x"],
        "A_k_cache": _A_in["k_cache"],
        "A_v_cache": _A_in["v_cache"],
        "A_wq": _A_in["wq"],
        "A_wo": _A_in["wo"],
        "B_x": _B_in["x"],
        "B_w_gate": _B_in["w_gate"],
        "B_w_up": _B_in["w_up"],
        "B_w_down": _B_in["w_down"],
        "gate_w": _w((lambda *s: torch.randn(*s, dtype=torch.bfloat16) * 0.05)(640) * 16.0),
    }

def reference(A_x, A_k_cache, A_v_cache, A_wq, A_wo, B_x, B_w_gate, B_w_up, B_w_down, gate_w):
    def _A_ref(x, k_cache, v_cache, wq, wo):
        B, Sq, D = x.shape
        Hq, Dh = 32, 192
        Hkv, Sk = k_cache.shape[1], k_cache.shape[2]
        W = min(4096, max(256, Sk // 4))
        rep = Hq // Hkv
        q = (lambda x, *d: x.permute(*d))((x @ wq).reshape(B, Sq, Hq, Dh), 0, 2, 1, 3)
        k = (lambda x, n, axis: torch.repeat_interleave(x, n, dim=axis))(k_cache[:, :, Sk - W:, :], rep, axis=1)
        v = (lambda x, n, axis: torch.repeat_interleave(x, n, dim=axis))(v_cache[:, :, Sk - W:, :], rep, axis=1)
        scores = torch.einsum("bhqd,bhkd->bhqk", q, k) * (Dh ** -0.5)
        p = _softmax(scores, axis=-1)
        o = torch.einsum("bhqk,bhkd->bhqd", p, v)
        return (lambda x, *d: x.permute(*d))(o, 0, 2, 1, 3).reshape(B, Sq, Hq * Dh) @ wo

    def _B_ref(x, w_gate, w_up, w_down):
        g = torch.einsum("bsd,df->bsf", x, w_gate)
        u = torch.einsum("bsd,df->bsf", x, w_up)
        h = _gelu(g) * u
        return torch.einsum("bsf,fd->bsd", h, w_down)

    x = A_x
    g = _sigmoid((x * gate_w).sum(-1, keepdims=True))
    a = _A_ref(x, A_k_cache, A_v_cache, A_wq, A_wo)
    b = _B_ref(x, B_w_gate, B_w_up, B_w_down)
    return g * a + (1 - g) * b
```

```python
import re

TRANS = ("v_exp_f32","v_log_f32","v_rcp_f32","v_rsq_f32","v_sqrt_f32","v_sin_f32","v_cos_f32")

def regs_of(tok):
    tok = tok.strip()
    tok = tok.lstrip("-")
    if tok.startswith("abs(") or tok.startswith("|"):
        tok = tok.replace("abs(","").replace(")","").replace("|","")
    m = re.fullmatch(r"([vs])\[(\d+):(\d+)\]", tok)
    if m: return {f"{m.group(1)}{i}" for i in range(int(m.group(2)), int(m.group(3))+1)}
    m = re.fullmatch(r"([vs])(\d+)", tok)
    if m: return {tok}
    if tok in ("vcc","exec"): return {tok}
    if tok in ("vcc_lo","vcc_hi"): return {"vcc"}
    if tok in ("exec_lo","exec_hi"): return {"exec"}
    return set()

class Ins:
    def __init__(self, text):
        self.text = text
        t = text.split(";")[0].strip()
        self.label = t.endswith(":")
        self.directive = t.startswith(".") and not self.label
        self.empty = (t == "")
        self.op = ""
        self.dst=set(); self.src=set(); self.states=0
        self.valu=self.mfma=self.vmem=self.ds=self.dpp=self.perml=self.trans=self.dot=self.sdwa=self.store=self.rl=False
        self.srcC=set(); self.srcAB=set(); self.wide=set()
        if self.label or self.directive or self.empty: return
        parts = t.split(None,1)
        op = self.op = parts[0]
        rest = parts[1] if len(parts)>1 else ""
        ops = [o.strip() for o in rest.split(",")]
        cl=[]
        depth=0
        for o in ops:
            cl.append(o.split()[0] if o else "")
        R=[regs_of(o) for o in cl]
        self.states = 1
        if op=="s_nop": self.states=int(rest,0)+1
        if op.startswith("v_mfma"):
            self.mfma=True; self.dst=R[0]; self.srcAB=R[1]|R[2]; self.srcC=R[3]; self.src=self.srcAB|self.srcC
        elif op.startswith("v_"):
            self.valu=True
            self.dpp = "_dpp" in op
            self.sdwa = "_sdwa" in op and "dst_sel" in rest and "dst_sel:DWORD" not in rest
            self.perml = op.startswith("v_permlane")
            self.trans = op.split("_e32")[0].split("_e64")[0] in TRANS
            self.dot = op.startswith("v_dot")
            self.rl = op.startswith("v_readlane") or op.startswith("v_readfirstlane")
            self.dst=set(R[0]); self.src=set().union(*R[1:]) if len(R)>1 else set()
            if op.startswith("v_cmpx"): self.dst|={"exec"}
            if self.perml: self.dst|=R[1]; self.src|=R[0]
            if op.startswith("v_fmac") or op.startswith("v_dot2c") or self.sdwa or self.dpp or op.startswith("v_writelane"): self.src|=R[0]
            if op.startswith("v_add_co") or op.startswith("v_addc_co") or op.startswith("v_sub_co"):
                self.dst|=R[1]
            if op.startswith("v_cndmask") and len(R)==3: self.src|={"vcc"}
            if op.startswith("v_dot2c"): self.srcC=set(R[0]); self.srcAB=R[1]|R[2]
            elif self.dot: self.srcC=set(R[3]); self.srcAB=R[1]|R[2]
        elif op.startswith("global_") or op.startswith("buffer_"):
            self.vmem=True
            if "store" in op or "atomic" in op:
                self.store=True; self.src=set().union(*R)
                if "x4" in op or "x3" in op:
                    self.wide = R[1] if op.startswith("global_") else R[0]
            elif op in ("buffer_inv","buffer_wbl2"): pass
            else:
                self.dst=R[0]; self.src=set().union(*R[1:])
        elif op.startswith("ds_"):
            self.ds=True
            if "read" in op or "permute" in op or "rtn" in op or "swizzle" in op:
                self.dst=R[0]; self.src=set().union(*R[1:])
            else: self.src=set().union(*R)

def need(p, c):
    n=0
    vd={r for r in p.dst if r[0]=="v" and r!="vcc"}
    sd=p.dst-vd
    if p.valu:
        if vd & c.src:
            if c.dpp: n=max(n,2)
            if c.perml: n=max(n,2)
            if c.mfma: n=max(n,2)
            if c.rl: n=max(n,1)
            if p.trans: n=max(n,1)
            if p.sdwa: n=max(n,1)
        if p.sdwa and (vd & c.dst) and c.valu: n=max(n,1)
        if p.dot and (vd & (c.src|c.dst)):
            if c.dot and c.op==p.op and not (vd & c.srcAB): pass
            else: n=max(n,3)
        s2 = sd-{"exec"}
        if s2 & c.src:
            if c.valu: n=max(n, 4 if (c.rl or c.op.startswith("v_writelane")) else 2)
            if c.vmem: n=max(n,5)
        if "exec" in sd:
            if c.dpp: n=max(n,5)
            if c.mfma or c.perml or c.rl or c.op.startswith("v_writelane"): n=max(n,4)
            if c.valu and "exec" in c.src: n=max(n,2)
    if p.mfma:
        passes = 8 if ("32x32" in p.op or "16x16x4_f32" in p.op) else 4
        raw = {4:8, 8:12}[passes]
        if c.mfma:
            if p.dst & c.srcAB: n=max(n,raw)
            if p.dst & c.srcC and p.dst != c.srcC: n=max(n,raw-2)
            if p.dst & c.dst and not (p.dst & c.srcC): n=max(n,raw)
        elif (p.dst & (c.src|c.dst)): n=max(n,raw)
        if c.valu and (p.srcC & c.dst): n=max(n,{4:3,8:7}[passes])
    if p.wide and c.valu and (p.wide & c.dst): n=max(n,2)
    if p.wide and (c.vmem or c.ds) and (p.wide & c.dst): n=max(n,1)
    return n

def pad(lines):
    out=[]; hist=[]
    nins=0
    for ln in lines:
        c=Ins(ln)
        if c.label or c.directive or c.empty:
            out.append(ln); continue
        dist=0; req=0
        for p in reversed(hist[-24:]):
            k=need(p,c)-dist
            if k>req: req=k
            dist+=p.states
            if dist>=20: break
        if req>0:
            nop=Ins(f"s_nop {req-1}"); out.append(f"    s_nop {req-1}"); hist.append(nop); nins+=1
        out.append(ln); hist.append(c)
        if c.op in ("s_branch","s_endpgm","s_setpc_b64"): hist=[]
    return out, nins

class Asm:
    def __init__(self): self.L=[]
    def __call__(self, s):
        for l in s.split("\n"):
            l=l.strip()
            if not l: continue
            self.L.append(l if (l.endswith(":") or l.startswith(".") or l.startswith(";")) else "    "+l)

import subprocess, tempfile, os
def sizes(lines):
    labs=set()
    for l in lines:
        t=l.split(";")[0].strip()
        if t.endswith(":"): labs.add(t[:-1])
    extra=[f"L_t{k}:" for k in range(40) if f"L_t{k}" not in labs]
    src='.amdgcn_target "amdgcn-amd-amdhsa--gfx950"\n.text\n'+"\n".join(lines)+"\n"+"\n".join(extra)+"\ns_endpgm\n"
    d=tempfile.mkdtemp()
    open(d+"/a.s","w").write(src)
    r=subprocess.run(["clang","-x","assembler","-target","amdgcn-amd-amdhsa","-mcpu=gfx950","-c",d+"/a.s","-o",d+"/a.o"],capture_output=True,text=True)
    if r.returncode: print(r.stderr[:3000]); raise SystemExit(1)
    o=subprocess.run(["llvm-objdump","-d","--mcpu=gfx950",d+"/a.o"],capture_output=True,text=True).stdout
    addrs=[int(m.group(1),16) for m in re.finditer(r"// ([0-9A-F]{12}):",o)]
    sz=[]; k=0
    for l in lines:
        c=Ins(l)
        if c.label or c.empty or c.directive: sz.append(0)
        else: sz.append(addrs[k+1]-addrs[k]); k+=1
    return sz

def place_pads(lines, entry_off=0x300, nwarm=3, verbose=False, target=None):
    sz=sizes(lines)
    out=[]; addr=entry_off
    def blk_end(a):
        a&=~63
        return min(a+1088, (a|4095)+1)
    end=blk_end(addr); forb=0; pads=[]
    i=0; n=len(lines)
    while i<n:
        l=lines[i]; t=l.strip()
        if t==";NOPAD{":
            j=i; a=addr
            while lines[j].strip()!=";NOPAD}": a+=sz[j]; j+=1
            if a>=end+64-4+1:
                fill=max(0,(end-addr)//4)
                out+= ["    s_nop 0"]*fill; addr+=4*fill
                if verbose: print(f"  live fill {fill} nops before NOPAD at {addr:#x}")
                out.append(f"L_t{len(pads)}:"); out.append("@PAD"); pads.append(addr); end=blk_end(addr); addr+=4
            forb+=1
        elif t==";NOPAD}": forb-=1
        elif t==";NEWBLOCK":
            tgt=end
            if blk_end(tgt)-tgt<256: tgt=blk_end(tgt)
            if tgt-addr<512:
                fill=(tgt-addr)//4
                if fill>0: out.append(f".fill {fill}, 4, 0xbf800000"); addr+=4*fill
                end=tgt
        if sz[i] and addr>=end and not forb:
            assert addr<end+64, f"missed line at {addr:#x} (end {end:#x})"
            out.append(f"L_t{len(pads)}:"); out.append("@PAD"); pads.append(addr); end=blk_end(addr); addr+=4
        out.append(l); addr+=sz[i]; i+=1
    k=0; res=[]
    for l in out:
        if l=="@PAD":
            tgt=f"L_t{k+nwarm}" if k+nwarm<len(pads) else "L_back"
            if target: tgt=target(k,len(pads))
            res.append(f"    s_cbranch_execz {tgt}"); k+=1
        else: res.append(l)
    if verbose: print("pads at",[hex(p) for p in pads],"end",hex(addr))
    return res, pads
```

```python
import sys, struct, math
sys.path.insert(0,"gen"); sys.path.insert(0,"exp")
from asmlib import Asm, pad, place_pads
NAME="gated_mix__sliding_block_cached__glu_gated_geglu__decode"
def f2u(x): return struct.unpack("<I", struct.pack("<f", x))[0]
LOG2E=f2u(math.log2(math.e)); SCALE=f2u(192**-0.5)
QG_BASE=0x1000; O_BASE=0x60000; F_BASE=0xA0000; STAMP_BASE=0x100000
DPP=" row_mask:0xf bank_mask:0xf"
X1="quad_perm:[1,0,3,2]"; X2="quad_perm:[2,3,0,1]"; HM="row_half_mirror"
L_SC=0; L_GATE=1536; L_CNT=1544; L_QB=1600; L_PD=2048
LDS=3584

def gen(path, kname=NAME+"_kernel", nt=True, stamps=False, pa=2, pb=7, spin=1<<16, warm=True, header=True,
        gsleep0=10, gsleep=20, fsleep0=12, fback=3, fthr=24, probe=None, fast=True, pretouch=True, verbose=False, outpre=True):
    A=Asm()
    NT=" nt" if nt else ""
    def stamp(i):
        if stamps: A(f"s_memrealtime s[{60+2*i}:{61+2*i}]")
    def masks():
        A("""v_mov_b32 v12, 0xffff
        v_mov_b32 v13, 0
        v_lshlrev_b64 v[12:13], v3, v[12:13]
        v_cmp_gt_u32 vcc, 4, v2
        v_cndmask_b32 v8, 0, v12, vcc
        v_cndmask_b32 v9, 0, v13, vcc
        v_cndmask_b32 v10, v12, 0, vcc
        v_cndmask_b32 v11, v13, 0, vcc""")
    def embed(r, tag="s42", ks=range(4)):
        for k in ks: A(f"v_mov_b32_sdwa v{r+k}, {tag} dst_sel:BYTE_0 dst_unused:UNUSED_PRESERVE src0_sel:BYTE_{k}")
    def fold(acc,tmp,tag="s42"):
        for k in range(4): A(f"v_permlane32_swap_b32 v{acc+k}, v{tmp+k}")
        for k in range(4): A(f"v_add_f32_dpp v{acc+k}, v{tmp+k}, v{acc+k} row_ror:8{DPP}")
        embed(acc,tag)
        A("s_mov_b64 exec, 0x00ff00ff")
    def cmpx(r,n=4):
        for k in range(n): A(f"v_cmpx_eq_u32_sdwa vcc, v{r+k}, s42 src0_sel:BYTE_0 src1_sel:BYTE_{k}")
    def checkq(r, t):
        A(f"v_xor_b32_sdwa v{t}, v{r+3}, s42 dst_sel:DWORD dst_unused:UNUSED_PAD src0_sel:BYTE_0 src1_sel:BYTE_3")
        A(f"v_xor_b32_sdwa v{t+1}, v{r+7}, s42 dst_sel:DWORD dst_unused:UNUSED_PAD src0_sel:BYTE_0 src1_sel:BYTE_3")
        A(";NOPAD{")
        cmpx(r,3); cmpx(r+4,3)
        A(f"v_cmpx_gt_u32 vcc, 8, v{t}\nv_cmpx_gt_u32 vcc, 8, v{t+1}")
        A("s_cmp_eq_u64 exec, -1\ns_mov_b64 exec, -1\n;NOPAD}")
    def poll2(name, PA, PB, t, wa, wb, reissue):
        A(f"s_waitcnt vmcnt({wa})")
        checkq(PA,t)
        A(f"s_cbranch_scc1 L_{name}_ok")
        A(f"s_add_u32 s43, s43, 1\ns_waitcnt vmcnt({wb})")
        for k in range(4): A(f"v_mov_b64 v[{PA+2*k}:{PA+2*k+1}], v[{PB+2*k}:{PB+2*k+1}]")
        A(f"L_{name}_chk:")
        checkq(PA,t)
        A(f"s_cbranch_scc1 L_{name}_ok")
        reissue(PA)
        A(f"s_cmp_lg_u32 s43, 3\ns_cbranch_scc1 L_{name}_nowb\nbuffer_wbl2 sc1\nL_{name}_nowb:")
        A(f"s_add_u32 s43, s43, 1\ns_cmp_lt_u32 s43, {spin}\ns_waitcnt vmcnt(0)\ns_cbranch_scc1 L_{name}_chk")
        A(f"L_{name}_ok:")
        A(f"v_cmp_ne_u32 s[48:49], s46, v{t}")
        A(f"s_cmp_eq_u64 s[48:49], 0\ns_cbranch_scc1 L_{name}_loc\nbuffer_wbl2 sc1\nL_{name}_loc:")
    def bf16r(r):
        A(f"v_cvt_pk_bf16_f32 v{r}, v{r}, v{r}\nv_and_b32 v{r}, 0xffff0000, v{r}")
    def allred_oct(op, r, t):
        A(f"{op}_dpp v{r}, v{r}, v{r} row_ror:8{DPP}")
        A(f"v_mov_b32 v{t}, v{r}\nv_permlane16_swap_b32 v{r}, v{t}\n{op} v{r}, v{r}, v{t}")
        A(f"v_mov_b32 v{t}, v{r}\nv_permlane32_swap_b32 v{r}, v{t}\n{op} v{r}, v{r}, v{t}")
    def allred8(op, rs):
        for m in (X1,X2,HM):
            for r in rs: A(f"{op}_dpp v{r}, v{r}, v{r} {m}{DPP}")
    def red8regs(a, b):
        for k in range(4): A(f"v_add_f32_dpp v{b+k}, v{a+k}, v{a+k} row_ror:8 row_mask:0xf bank_mask:0x3")
        for k in range(4): A(f"v_add_f32_dpp v{b+k}, v{a+4+k}, v{a+4+k} row_ror:8 row_mask:0xf bank_mask:0xc")
        A(f"v_permlane16_swap_b32 v{b}, v{b+1}\nv_permlane16_swap_b32 v{b+2}, v{b+3}")
        A(f"v_add_f32 v{b}, v{b}, v{b+1}\nv_add_f32 v{b+2}, v{b+2}, v{b+3}")
        A(f"v_permlane32_swap_b32 v{b}, v{b+2}\nv_add_f32 v{b}, v{b}, v{b+2}")
    def abuild(dst, src, low):
        for d in range(4):
            own = (d<2)==low
            if own: A(f"v_and_b32 v{dst+d}, v{src}, v{8+d}")
            else: A(f"v_and_b32_dpp v{dst+d}, v{src}, v{8+d} {HM}{DPP}")

    A(f"{kname}:")
    stamp(0)
    A("""s_cmp_ge_u32 s2, 256
    s_cbranch_scc1 L_end
    s_load_dwordx16 s[16:31], s[0:1], 0
    s_load_dwordx8 s[32:39], s[0:1], 64
    s_load_dwordx2 s[40:41], s[0:1], 96
    v_lshrrev_b32 v1, 6, v0
    v_and_b32 v0, 63, v0
    v_readfirstlane_b32 s3, v1
    s_and_b32 s4, s2, 7
    s_lshr_b32 s5, s2, 6
    s_lshl3_add_u32 s4, s5, s4
    s_bfe_u32 s5, s2, 0x30003
    v_lshrrev_b32 v1, 3, v0
    v_and_b32 v2, 7, v0
    v_lshlrev_b32 v3, 4, v2
    s_mov_b32 s43, 0
    s_getreg_b32 s46, hwreg(HW_REG_XCC_ID, 0, 3)
    s_cmp_ge_u32 s3, 5
    s_cbranch_scc1 L_kv""")
    W0=24; WO=72; WD=104; GX=72
    A(f"""s_setprio 1
    s_mul_i32 s7, s4, 3
    s_add_u32 s7, s7, s3
    s_movk_i32 s6, 0x3000
    s_cmp_lt_u32 s3, 3
    s_cselect_b32 s7, s7, s4
    s_cselect_b32 s6, s6, 0xc00
    s_mul_i32 s8, s5, 80
    v_mad_u32_u24 v5, v1, 10, s8
    v_mul_u32_u24 v4, s6, v5
    s_lshl_b32 s7, s7, 7
    v_add3_u32 v4, v4, v3, s7
    v_lshlrev_b32 v5, 1, v5
    s_cmp_ge_u32 s4, 24
    s_cselect_b32 s9, 3, 5
    s_lshl2_add_u32 s12, s5, s3
    s_cmp_eq_u32 s5, 7
    s_subb_u32 s12, s12, 0
    s_mul_i32 s13, s12, 43
    s_lshr_b32 s13, s13, 7
    s_mul_i32 s8, s13, 3
    s_sub_u32 s12, s12, s8
    s_movk_i32 s8, 10240
    v_mad_u32_u24 v6, v1, s8, v3
    v_mul_u32_u24 v7, 20, v0
    s_waitcnt lgkmcnt(0)
    s_cmp_lt_u32 s3, 3
    s_cselect_b64 s[26:27], s[22:23], s[28:29]
    s_cmp_lg_u32 s3, 4
    s_cbranch_scc1 L_nog1
    s_mov_b64 s[26:27], s[30:31]
    global_load_dwordx4 v[{GX}:{GX+3}], v7, s[16:17]
    global_load_dword v{GX+4}, v7, s[16:17] offset:16
    global_load_dwordx4 v[{GX+6}:{GX+9}], v7, s[34:35]
    global_load_dword v{GX+10}, v7, s[34:35] offset:16
    L_nog1:
    s_cmp_ge_u32 s3, s9
    s_cbranch_scc1 L_p_iss""")
    A("global_load_dwordx4 v[16:19], v5, s[16:17]")
    A("global_load_dword v20, v5, s[16:17] offset:16")
    for oc in range(10):
        A(f"global_load_dwordx4 v[{W0+4*oc}:{W0+4*oc+3}], v4, s[26:27]{NT}")
        if oc<9: A("v_add_u32 v4, s6, v4")
    A("L_p_iss:")
    stamp(1)
    A(f"""s_setprio 0
    s_load_dword s42, s[40:41], 0
    s_mov_b32 s14, 0
    s_cmp_lt_u32 s5, 6
    s_cselect_b32 s8, 4, 3
    s_cmp_ge_u32 s3, s8
    s_cbranch_scc1 L_o_iss
    s_mov_b32 s14, 1
    s_lshl_b32 s10, s13, 7
    s_mul_i32 s15, s4, 3
    s_add_u32 s15, s15, s12
    s_mul_i32 s8, s15, {64*1280}
    s_add_u32 s8, s8, s10
    s_add_u32 s8, s8, 3840
    v_add_u32 v4, s8, v6""")
    for k in range(8):
        if k==7: A("v_add_u32 v4, 5120, v4")
        elif k: A("s_nop 0")
        A(f"global_load_dwordx4 v[{WO+4*k}:{WO+4*k+3}], v4, s[24:25] offset:{(1280*k-3840) if k<7 else 0}{NT}")
    A(f"""s_cmp_ge_u32 s4, 24
    s_cbranch_scc1 L_o_iss
    s_cmp_eq_u32 s12, 2
    s_cbranch_scc1 L_o_iss
    s_mov_b32 s14, 2
    s_lshl4_add_u32 s8, s4, s12
    s_mul_i32 s8, s8, {4*1280}
    s_add_u32 s8, s8, s10
    v_add_u32 v4, s8, v6""")
    for k in range(4):
        if k: A("s_nop 0")
        A(f"global_load_dwordx4 v[{WD+4*k}:{WD+4*k+3}], v4, s[32:33] offset:{1280*k}{NT}")
    A("L_o_iss:")
    stamp(4)
    A("s_waitcnt lgkmcnt(0)\ns_barrier")
    stamp(5)
    masks()
    A(f"""v_bfe_u32 v7, v0, 4, 1
    v_lshl_add_u32 v7, v7, 7, v3
    s_add_u32 s42, s42, 0x01010101
    s_mul_i32 s44, s4, 10240
    s_add_u32 s44, s44, {QG_BASE}
    s_cmp_ge_u32 s3, s9
    s_cbranch_scc1 L_p_done
    s_lshl_b32 s47, s46, 24
    s_xor_b32 s47, s47, s42
    s_lshl3_add_u32 s8, s3, s5
    s_lshl_b32 s8, s8, 8
    s_add_u32 s8, s8, s44
    v_add_u32 v6, s8, v7
    s_mov_b32 s10, 0x01000100
    s_mov_b32 s11, 0x03020302
    s_waitcnt vmcnt(12)
    s_cmp_eq_u32 s14, 2
    s_cbranch_scc1 L_p_go
    s_waitcnt vmcnt(8)
    s_cmp_eq_u32 s14, 1
    s_cbranch_scc1 L_p_go
    s_waitcnt vmcnt(0)
    L_p_go:""")
    stamp(2)
    AB=64
    for oc in range(11):
        if oc<10:
            A(f"v_perm_b32 v21, v{16+oc//2}, v{16+oc//2}, s{10+(oc&1)}")
            for d in range(4): A(f"v_and_b32 v{AB+4*(oc&1)+d}, v21, v{8+d}")
        if oc>=1:
            k=oc-1
            A(f"v_mfma_f32_16x16x32_bf16 v[12:15], v[{AB+4*(k&1)}:{AB+4*(k&1)+3}], v[{W0+4*k}:{W0+4*k+3}], {'0' if k==0 else 'v[12:15]'}")
    fold(12,16,"s47")
    A("global_store_dwordx4 v6, v[12:15], s[40:41]\ns_mov_b64 exec, -1")
    stamp(3)
    A("L_p_done:")
    A("s_cmp_eq_u32 s14, 0\ns_cbranch_scc1 L_p_exit")
    A(f"""s_lshl_b32 s8, s4, 13
    s_add_u32 s8, s8, {O_BASE}
    s_add_u32 s10, s8, 6144
    v_add_u32 v5, s10, v3
    s_lshl_b32 s10, s12, 11
    s_add_u32 s8, s8, s10
    v_lshl_add_u32 v4, v0, 4, s8
    s_lshl_b32 s8, s15, 8
    s_lshl_b32 s10, s13, 15
    s_add_u32 s8, s8, s10
    s_add_u32 s8, s8, {F_BASE}
    v_add_u32 v6, s8, v7
    s_lshr_b32 s51, s42, 8
    s_lshr_b32 s52, s42, 16
    s_lshr_b32 s53, s42, 24
    v_mov_b32 v16, 0
    v_mov_b32 v17, 0
    v_mov_b32 v18, 0
    v_mov_b32 v19, 0
    s_cmp_lg_u32 s14, 2
    s_cbranch_scc1 L_o_wait
    s_lshl_b32 s8, s12, 7
    s_add_u32 s8, s8, s44
    s_add_u32 s8, s8, {3*2048}
    v_lshlrev_b32 v20, 8, v2
    v_lshl_add_u32 v20, v1, 4, v20
    v_add_u32 v20, s8, v20
    s_waitcnt vmcnt(0)""")
    stamp(6)
    GA=24; GB=32; T=40
    def guissue(r, fl=" sc1"):
        A(f"global_load_dwordx4 v[{r}:{r+3}], v20, s[40:41]{fl}\nglobal_load_dwordx4 v[{r+4}:{r+7}], v20, s[40:41] offset:2048{fl}")
    A(f"s_sleep {gsleep0}")
    guissue(GA,"")
    A(f"s_sleep {gsleep}")
    guissue(GB)
    poll2("gu",GA,GB,T+4,2,0,guissue)
    stamp(7)
    for k in range(4): A(f"v_add_f32_dpp v{T+k}, v{GA+k}, v{GA+k} {HM} row_mask:0xf bank_mask:0x5")
    for k in range(4): A(f"v_add_f32_dpp v{T+k}, v{GA+4+k}, v{GA+4+k} {HM} row_mask:0xf bank_mask:0xa")
    for m in (X1,X2):
        for k in range(4): A(f"v_add_f32_dpp v{T+k}, v{T+k}, v{T+k} {m}{DPP}")
    C1=f2u(-2*math.sqrt(2/math.pi)*math.log2(math.e)); C3=f2u(0.044715)
    A(f"s_mov_b32 s8, 0xffff0000\ns_mov_b32 s10, {hex(C3)}\ns_mov_b32 s11, {hex(C1)}")
    U=T+4
    steps=[lambda g,t:f"v_cvt_pk_bf16_f32 v{g}, v{g}, v{g}", lambda g,t:f"v_and_b32 v{g}, s8, v{g}",
           lambda g,t:f"v_mul_f32 v{t}, v{g}, v{g}", lambda g,t:f"v_mul_f32 v{t}, s10, v{t}", lambda g,t:f"v_fma_f32 v{t}, v{t}, v{g}, v{g}",
           lambda g,t:f"v_mul_f32 v{t}, s11, v{t}", lambda g,t:f"v_exp_f32 v{t}, v{t}", lambda g,t:f"v_add_f32 v{t}, 1.0, v{t}",
           lambda g,t:f"v_rcp_f32 v{t}, v{t}", lambda g,t:f"v_mul_f32 v{t}, v{g}, v{t}", lambda g,t:f"v_cvt_pk_bf16_f32 v{t}, v{t}, v{t}",
           lambda g,t:f"v_and_b32 v{t}, s8, v{t}", lambda g,t:f"v_mul_f32_dpp v{t}, v{g}, v{t} {HM}{DPP}", lambda g,t:f"v_cvt_pk_bf16_f32 v{t}, v{t}, v{t}"]
    for st_ in steps:
        for k in range(4): A(st_(T+k,U+k))
    for k in range(4): abuild(48+4*k,U+k,True)
    for k in range(4): A(f"v_mfma_f32_16x16x32_bf16 v[16:19], v[{48+4*k}:{51+4*k}], v[{WD+4*k}:{WD+4*k+3}], {'0' if k==0 else 'v[16:19]'}")
    A("L_o_wait:")
    A("v_mov_b32 v21, 0\ns_waitcnt vmcnt(0)")
    stamp(10)
    A("s_barrier")
    stamp(8)
    OA=24; ML=32; M=36; CK=37; R=40
    oiss=f"""global_load_dwordx4 v[{ML}:{ML+3}], v5, s[40:41] sc1
    global_load_dwordx4 v[{OA}:{OA+3}], v4, s[40:41] sc1
    global_load_dwordx4 v[{OA+4}:{OA+7}], v4, s[40:41] offset:1024 sc1"""
    A(oiss)
    A(f"ds_read_b64 v[22:23], v21 offset:{L_GATE}\ns_waitcnt lgkmcnt(0)")
    for k in range(4): A(f"v_mul_f32 v{16+k}, v{16+k}, v23")
    A("s_branch L_o_in")
    A("L_o_loop:")
    A(oiss)
    A(f"""L_o_in:
    s_add_u32 s43, s43, 0x100
    s_cmp_ge_u32 s43, {spin*256}
    s_waitcnt vmcnt(2)""")
    tg=["s42","s51","s52","s53"]
    def chk(r,k,first=False):
        if first: A(f"v_xor_b32 v{CK}, {tg[k]}, v{r+k}")
        else: A(f"v_bitop3_b32 v{CK}, v{CK}, v{r+k}, {tg[k]} bitop3:0xf6")
    A(f"v_max_f32_dpp v{M}, v{ML}, v{ML} {X1}{DPP}")
    chk(ML,0,True); chk(ML,1)
    A(f"v_max_f32_dpp v{M}, v{M}, v{M} {X2}{DPP}")
    chk(ML,2); chk(ML,3)
    A(f"v_max_f32_dpp v{M}, v{M}, v{M} {HM}{DPP}")
    A(f"v_sub_f32 v{M}, v{ML}, v{M}\nv_exp_f32 v{M}, v{M}")
    A("s_waitcnt vmcnt(0)")
    for r in (OA,OA+4):
        for k in range(4): chk(r,k)
    A(f"v_cmp_ne_u32_sdwa vcc, v{CK}, v21 src0_sel:BYTE_0 src1_sel:BYTE_0")
    A("s_cbranch_scc1 L_o_ok")
    A("s_cbranch_vccnz L_o_loop")
    A("L_o_ok:")
    stamp(11)
    for k in range(8): A(f"v_mul_f32 v{OA+k}, v{OA+k}, v{M}")
    A(f"v_mul_f32 v{ML+1}, v{ML+1}, v{M}")
    for k in range(4): A(f"v_add_f32_dpp v{R+k}, v{OA+k}, v{OA+k} {HM} row_mask:0xf bank_mask:0x5")
    for k in range(4): A(f"v_add_f32_dpp v{R+k}, v{OA+4+k}, v{OA+4+k} {HM} row_mask:0xf bank_mask:0xa")
    for m in (X1,X2):
        for k in range(4): A(f"v_add_f32_dpp v{R+k}, v{R+k}, v{R+k} {m}{DPP}")
    for k in range(4): A(f"v_cvt_pk_bf16_f32 v{R+k}, v{R+k}, v{R+k}")
    extra=[f"v_add_f32_dpp v{ML+1}, v{ML+1}, v{ML+1} {m}{DPP}" for m in (X1,X2,HM)]+[f"v_rcp_f32 v{ML+1}, v{ML+1}", f"v_mul_f32 v22, v22, v{ML+1}"]
    AB=48
    for k in range(9):
        if k<8: abuild(AB+4*(k%3), R+(k&3), k<4)
        if k>=1:
            j=k-1
            if k==8: A(extra.pop(0))
            A(f"v_mfma_f32_16x16x32_bf16 v[12:15], v[{AB+4*(j%3)}:{AB+4*(j%3)+3}], v[{WO+4*j}:{WO+4*j+3}], {'0' if j==0 else 'v[12:15]'}")
    for e in extra: A(e)
    for k in range(4): A(f"v_fma_f32 v{12+k}, v{12+k}, v22, v{16+k}")
    fold(12,16)
    A("global_store_dwordx4 v6, v[12:15], s[40:41] sc1")
    stamp(9)
    if stamps: A("s_branch L_fin")
    A("s_endpgm")
    A("L_p_exit:")
    A("s_cmp_lg_u32 s3, 4\ns_cbranch_scc1 L_fin0")
    G0=30
    A(f"s_cmp_lt_u32 s4, 24\ns_cbranch_scc1 L_g3\ns_waitcnt vmcnt(0)\nL_g3:\nv_mov_b32 v{G0}, 0\nv_mov_b32 v21, 0\ns_mov_b32 s8, 0xffff0000")
    for k in range(5):
        a,b,c,d=G0+2,G0+3,G0+4,G0+5
        A(f"""v_lshlrev_b32 v{a}, 16, v{GX+k}
        v_and_b32 v{b}, s8, v{GX+k}
        v_lshlrev_b32 v{c}, 16, v{GX+6+k}
        v_and_b32 v{d}, s8, v{GX+6+k}
        v_pk_mul_f32 v[{a}:{b}], v[{a}:{b}], v[{c}:{d}]
        v_cvt_pk_bf16_f32 v{a}, v{a}, v{b}
        v_lshlrev_b32 v{b}, 16, v{a}
        v_and_b32 v{a}, s8, v{a}
        v_add_f32 v{G0}, v{G0}, v{b}
        v_add_f32 v{G0}, v{G0}, v{a}""")
    allred8("v_add_f32",[G0]); allred_oct("v_add_f32",G0,G0+1)
    bf16r(G0)
    A(f"""v_mul_f32 v{G0}, {hex(f2u(-math.log2(math.e)))}, v{G0}
    v_exp_f32 v{G0}, v{G0}
    v_add_f32 v{G0}, 1.0, v{G0}
    v_rcp_f32 v{G0}, v{G0}""")
    bf16r(G0)
    A(f"v_sub_f32 v{G0+1}, 1.0, v{G0}")
    bf16r(G0+1)
    A(f"ds_write_b64 v21, v[{G0}:{G0+1}] offset:{L_GATE}")
    A("s_waitcnt lgkmcnt(0)\ns_branch L_pubdone")
    A(";NEWBLOCK")
    A("L_kv:")
    K0=16; V0=80; PA=144; PB=152; S=160
    A("s_sub_u32 s6, s3, 5")
    A(f"""s_lshl_b32 s8, s4, 13
    s_add_u32 s45, s8, {O_BASE}
    s_waitcnt lgkmcnt(0)
    s_load_dword s42, s[40:41], 0""")
    if warm:
        A(""";NOPAD{
        s_mov_b64 exec, 0
        s_cmp_eq_u32 s6, 1
        s_cbranch_scc1 L_t1
        s_cmp_eq_u32 s6, 2
        s_cbranch_scc1 L_t2
        s_branch L_t0
        L_back:
        s_mov_b64 exec, -1
        ;NOPAD}""")
    A(f"""s_lshl_b32 s8, s5, 10
    s_add_u32 s8, s8, s45
    v_lshl_add_u32 v185, v2, 7, s8
    s_mul_i32 s7, s4, 1572864
    s_mul_i32 s8, s5, 49152
    s_add_u32 s7, s7, s8
    s_lshl_b32 s8, s6, 7
    s_add_u32 s7, s7, s8
    s_add_u32 s7, s7, {3072*384+3072}
    s_movk_i32 s8, 6144
    v_mad_u32_u24 v4, v1, s8, v3
    v_add_u32 v4, s7, v4
    v_mov_b32 v183, 0
    ds_write_b32 v183, v183 offset:{L_CNT}
    s_mul_i32 s8, s4, 10240
    s_lshl_b32 s10, s6, 11
    s_add_u32 s8, s8, s10
    s_add_u32 s8, s8, {QG_BASE}
    v_lshl_add_u32 v5, v1, 8, v3
    v_add_u32 v5, s8, v5""")
    masks()
    A(f"""s_lshl4_add_u32 s8, s5, s45
    s_add_u32 s11, s8, 6144
    v_mov_b32 v7, s11
    s_add_u32 s8, s8, s10
    v_bfe_u32 v176, v0, 4, 1
    v_lshl_add_u32 v6, v176, 3, v2
    v_lshl_add_u32 v6, v6, 7, s8
    v_lshrrev_b32 v177, 5, v0
    v_lshl_add_u32 v177, v177, 1, v176
    v_and_b32 v176, 1, v1
    v_lshl_add_u32 v177, v176, 2, v177
    s_lshl_b32 s8, s6, 7
    v_add_u32 v178, s8, v3
    v_lshl_add_u32 v177, v177, 1, v178
    s_lshl_b32 s8, s6, 9
    v_lshrrev_b32 v176, 2, v2
    v_lshlrev_b32 v182, 6, v1
    v_add_u32 v182, s8, v182
    v_lshl_add_u32 v179, v176, 5, v182
    v_lshlrev_b32 v180, 3, v0
    v_add_u32 v181, s8, v180
    v_mov_b32 v184, 1""")
    A("s_waitcnt lgkmcnt(0)\ns_add_u32 s42, s42, 0x01010101")
    stamp(12)
    A("s_barrier")
    if pretouch: A("s_cmp_lg_u32 s6, 0\ns_cbranch_scc1 L_nopre\ns_mov_b64 exec, 0xff\nglobal_load_dword v192, v185, s[40:41] sc1\ns_mov_b64 exec, -1\nL_nopre:")
    seq=[]
    def qissue(r):
        A(f"global_load_dwordx4 v[{r}:{r+3}], v5, s[40:41] sc1\nglobal_load_dwordx4 v[{r+4}:{r+7}], v5, s[40:41] offset:128 sc1")
    for oc in range(16):
        A(f"global_load_dwordx4 v[{K0+4*oc}:{K0+4*oc+3}], v4, s[18:19] offset:{oc*384-3072}{NT}\ns_nop 0"); seq.append(f"K{oc}")
    stamp(1)
    for oc in range(17):
        if oc==pa: qissue(PA); seq+=["PA0","PA1"]; A("s_nop 0"); stamp(2)
        if oc==pb: qissue(PB); seq+=["PB0","PB1"]; A("s_nop 0")
        if oc<16:
            A(f"global_load_dwordx4 v[{V0+4*oc}:{V0+4*oc+3}], v4, s[20:21] offset:{oc*384-3072}{NT}"); seq.append(f"V{oc}")
            if oc<15: A("s_nop 0")
    after=lambda n: len(seq)-1-seq.index(n)
    stamp(3)
    poll2("q",PA,PB,S+4,after('PA1'),after('PB1'),qissue)
    stamp(5)
    red8regs(PA,S)
    A(f"""v_cvt_pk_bf16_f32 v{S}, v{S}, v{S}
    ds_write_b16 v177, v{S} offset:{L_QB}
    ds_read_b128 v[12:15], v178 offset:{L_QB}
    s_waitcnt lgkmcnt(0)""")
    for oc in range(16): A(f"v_dot2_f32_bf16 v{S+oc}, v{K0+4*oc}, v12, 0")
    for d in range(1,4):
        for oc in range(16): A(f"v_dot2c_f32_bf16 v{S+oc}, v{K0+4*oc+d}, v{12+d}")
    T=PA
    for k in range(8): A(f"v_add_f32_dpp v{T+k}, v{S+k}, v{S+k} {HM} row_mask:0xf bank_mask:0x5")
    for k in range(8): A(f"v_add_f32_dpp v{T+k}, v{S+8+k}, v{S+8+k} {HM} row_mask:0xf bank_mask:0xa")
    for m in (X1,X2):
        for k in range(8): A(f"v_add_f32_dpp v{T+k}, v{T+k}, v{T+k} {m}{DPP}")
    A(f"""s_mov_b32 exec_lo, 0x11111111
    s_mov_b32 exec_hi, 0x11111111
    ds_write_b128 v179, v[{T}:{T+3}]
    ds_write_b128 v179, v[{T+4}:{T+7}] offset:16
    s_mov_b64 exec, 1
    ds_add_u32 v183, v184 offset:{L_CNT}
    s_mov_b64 exec, -1""")
    stamp(6)
    A("L_sc:")
    A(f"""ds_read_b32 v16, v183 offset:{L_CNT}
    ds_read_b64 v[18:19], v180
    ds_read_b64 v[20:21], v180 offset:512
    ds_read_b64 v[22:23], v180 offset:1024
    s_waitcnt lgkmcnt(3)
    v_readfirstlane_b32 s8, v16
    s_cmp_lt_u32 s8, 3
    s_waitcnt lgkmcnt(0)
    s_cbranch_scc1 L_sc""")
    stamp(7)
    A(f"""v_add_f32 v18, v18, v20
    v_add_f32 v19, v19, v21
    v_add_f32 v18, v18, v22
    v_add_f32 v19, v19, v23
    v_cvt_pk_bf16_f32 v18, v18, v19
    v_and_b32 v19, 0xffff0000, v18
    v_lshlrev_b32 v18, 16, v18
    v_mul_f32 v18, {hex(SCALE)}, v18
    v_mul_f32 v19, {hex(SCALE)}, v19
    v_cvt_pk_bf16_f32 v18, v18, v19
    v_and_b32 v19, 0xffff0000, v18
    v_lshlrev_b32 v18, 16, v18
    v_mul_f32 v18, {hex(LOG2E)}, v18
    v_mul_f32 v19, {hex(LOG2E)}, v19
    v_max_f32 v188, v18, v19""")
    allred8("v_max_f32",[188]); allred_oct("v_max_f32",188,20)
    embed(188,ks=[0])
    A(f"""v_sub_f32 v18, v18, v188
    v_sub_f32 v19, v19, v188
    v_exp_f32 v18, v18
    v_exp_f32 v19, v19
    v_cvt_pk_bf16_f32 v20, v18, v18
    v_cvt_pk_bf16_f32 v21, v19, v19
    ds_write_b64 v181, v[20:21] offset:{L_PD}""")
    for j in range(4): A(f"ds_read_b128 v[{S+4*j}:{S+4*j+3}], v182 offset:{L_PD+16*j}")
    A("v_add_f32 v189, v18, v19")
    allred8("v_add_f32",[189]); allred_oct("v_add_f32",189,20)
    embed(188,ks=[1,2,3])
    A("s_waitcnt lgkmcnt(0)")
    stamp(8)
    for oc in range(16):
        for d in range(4): A(f"v_and_b32 v{K0+4*oc+d}, v{S+oc}, v{8+d}")
    for oc in range(16):
        n=after('V%d'%oc)
        if n<after('PA1'): A(f"s_waitcnt vmcnt({n})")
        A(f"v_mfma_f32_16x16x32_bf16 v[12:15], v[{K0+4*oc}:{K0+4*oc+3}], v[{V0+4*oc}:{V0+4*oc+3}], {'0' if oc==0 else 'v[12:15]'}")
    stamp(9)
    A("s_mov_b64 exec, 1")
    if fast:
        A("s_cmp_lg_u64 s[48:49], 0\ns_cbranch_scc1 L_slowpub")
        A("global_store_dwordx4 v7, v[188:191], s[40:41]\ns_mov_b64 exec, -1")
        fold(12,PA)
        A("global_store_dwordx4 v6, v[12:15], s[40:41]")
    else:
        A("global_store_dwordx4 v7, v[188:191], s[40:41] sc1\ns_mov_b64 exec, -1")
        fold(12,PA)
        A("global_store_dwordx4 v6, v[12:15], s[40:41] sc1")
    A("L_pubdone:")
    stamp(10)
    A("s_barrier")
    A(f"""s_cmp_lt_u32 s4, 24
    s_cbranch_scc1 L_fin
    s_sub_u32 s8, s4, 24
    s_cmp_ge_u32 s3, 6
    s_cbranch_scc1 L_red
    s_add_u32 s8, s8, 8
    s_cmp_ge_u32 s8, 10
    s_cbranch_scc1 L_fin
    L_red:
    s_mov_b64 exec, -1
    s_and_b32 s11, s3, 1
    s_lshl_b32 s10, s8, 15
    s_lshl3_add_u32 s12, s11, s5
    s_lshl4_add_u32 s10, s12, s10
    s_add_u32 s10, s10, {F_BASE}
    v_lshlrev_b32 v19, 8, v0
    v_add_u32 v19, s10, v19
    v_add_u32 v21, 0x4000, v19
    s_lshl1_add_u32 s11, s5, s11
    s_lshl4_add_u32 s8, s8, s11
    s_lshl_b32 s15, s8, 3
    v_bfe_u32 v20, v0, 4, 1
    v_lshrrev_b32 v22, 5, v0
    v_lshl_add_u32 v20, v20, 1, v22
    v_lshl_add_u32 v20, v20, 1, s15
    v_mov_b32 v36, 0
    v_mov_b32 v37, 0
    v_mov_b32 v38, 0
    v_mov_b32 v39, 0
    s_mov_b64 s[50:51], -1
    s_mov_b32 s52, -1
    s_mov_b32 s53, 0""")
    stamp(11)
    if fsleep0: A(f"s_sleep {fsleep0}")
    if outpre: A("global_load_ushort v40, v20, s[36:37] sc1")
    A(";NOPAD{")
    A("L_f_loop:")
    A("""s_mov_b64 exec, s[50:51]
    s_cbranch_execz L_f1
    global_load_dwordx4 v[32:35], v19, s[40:41] sc1
    L_f1:
    s_mov_b64 exec, s[52:53]
    s_cbranch_execz L_f2
    global_load_dwordx4 v[36:39], v21, s[40:41] sc1
    L_f2:
    s_add_u32 s43, s43, 0x10000
    s_waitcnt vmcnt(0)""")
    cmpx(36)
    A("s_andn2_b64 s[52:53], s[52:53], exec\ns_mov_b64 exec, s[50:51]")
    cmpx(32)
    A(f"""s_andn2_b64 s[50:51], s[50:51], exec
    s_or_b64 s[54:55], s[50:51], s[52:53]
    s_cbranch_scc0 L_f_ok
    s_bcnt1_i32_b64 s8, s[54:55]
    s_cmp_lt_u32 s8, {fthr}
    s_cbranch_scc1 L_f3
    s_sleep {fback}
    L_f3:
    s_cmp_lt_u32 s43, 0xf0000000
    s_cbranch_scc1 L_f_loop
    L_f_ok:
    s_mov_b64 exec, -1""")
    A(";NOPAD}")
    stamp(13)
    for k in range(4): A(f"v_add_f32 v{24+k}, v{32+k}, v{36+k}")
    A("""v_permlane32_swap_b32 v24, v25
    v_permlane32_swap_b32 v26, v27
    v_add_f32 v24, v24, v25
    v_add_f32 v26, v26, v27
    v_permlane16_swap_b32 v24, v26
    v_add_f32 v24, v24, v26""")
    for m in ("row_ror:8",HM,X2,X1): A(f"v_add_f32_dpp v24, v24, v24 {m}{DPP}")
    A("""v_cvt_pk_bf16_f32 v24, v24, v24
    s_mov_b32 exec_lo, 0x00010001
    s_mov_b32 exec_hi, 0x00010001
    global_store_short v20, v24, s[36:37]
    s_cmp_lg_u32 s15, 0
    s_cbranch_scc1 L_fin
    s_mov_b64 exec, 1
    v_mov_b32 v26, s42
    global_store_dword v20, v26, s[40:41]""")
    if stamps: A("s_branch L_fin\nL_fin0:\ns_barrier")
    else: A("L_fin0:")
    A("L_fin:")
    stamp(14)
    if stamps:
        A("s_mov_b64 exec, -1")
        A("s_waitcnt lgkmcnt(0)")
        if probe is not None:
            lo,hi,st,sign,wgsel=probe
            A("v_mov_b32 v251, 0\ns_or_b32 s98, s2, s3\ns_cbranch_scc1 L_dbgd\nv_mov_b32 v250, s60\nglobal_store_dword v251, v250, s[38:39] sc1\nL_dbgd:")
            A(f"s_cmp_lt_u32 s3, {lo}\ns_cbranch_scc1 L_end\ns_cmp_gt_u32 s3, {hi}\ns_cbranch_scc1 L_end")
            if wgsel is not None: A(f"s_cmp_lg_u32 s2, {wgsel}\ns_cbranch_scc1 L_end")
            A(f"L_dbgw:\ns_sleep 32\ns_memrealtime s[96:97]\ns_waitcnt lgkmcnt(0)\ns_sub_u32 s96, s96, s60\ns_cmp_lt_u32 s96, 3500\ns_cbranch_scc1 L_dbgw")
            A("global_load_dword v250, v251, s[38:39] sc1\ns_waitcnt vmcnt(0)\nv_readfirstlane_b32 s95, v250")
            A(f"s_sub_u32 s94, s{60+2*st}, s95\ns_mul_i32 s94, s94, {10*sign}\ns_add_u32 s94, s94, {6000 if sign>=0 else 30000}")
            A(f"s_min_u32 s94, s94, 50000")
            A(f"L_dbgx:\ns_sleep 2\ns_memrealtime s[96:97]\ns_waitcnt lgkmcnt(0)\ns_sub_u32 s96, s96, s95\ns_cmp_lt_u32 s96, s94\ns_cbranch_scc1 L_dbgx")
        else:
            A("L_dbgw:\ns_sleep 32\ns_memrealtime s[96:97]\ns_waitcnt lgkmcnt(0)\ns_sub_u32 s96, s96, s60\ns_cmp_lt_u32 s96, 1500\ns_cbranch_scc1 L_dbgw")
            for i in range(16): A(f"v_writelane_b32 v250, s{60+2*i}, {i}")
            A("v_writelane_b32 v250, s46, 16")
            A("v_writelane_b32 v250, s43, 17")
            A("s_getreg_b32 s98, hwreg(HW_REG_HW_ID)")
            A("v_writelane_b32 v250, s98, 18")
            A("s_lshl_b32 s98, s2, 3\ns_add_u32 s98, s98, s3\ns_lshl_b32 s98, s98, 8")
            A(f"s_add_u32 s98, s98, {STAMP_BASE}")
            A("v_lshl_add_u32 v251, v0, 2, s98")
            A("global_store_dword v251, v250, s[40:41]")
    A("L_end:")
    A("s_endpgm")
    if fast:
        A("L_slowpub:")
        A("global_store_dwordx4 v7, v[188:191], s[40:41] sc1\ns_mov_b64 exec, -1\ns_nop 4")
        fold(12,PA)
        A("global_store_dwordx4 v6, v[12:15], s[40:41] sc1\ns_branch L_pubdone")
    L=A.L
    body,n=pad(L)
    if warm:
        body,pads=place_pads(body, entry_off=0, verbose=verbose)
    nv = 256 if stamps else 200
    hdr=open(f"cdna_kernels/{NAME}.s.ref").read().split("; Override launch")[0] if header else ""
    txt=hdr+f"""; @launch grid=(256,1,1) block=(512,1,1) lds={LDS}
.amdgcn_target "amdgcn-amd-amdhsa--gfx950"
.text
.globl {kname}
.p2align 12
.fill 832, 4, 0xbf800000
.p2align 8
.type {kname},@function
"""+"\n".join(body)+f"""
.section .rodata,"a"
.p2align 6
.amdhsa_kernel {kname}
  .amdhsa_next_free_vgpr {nv}
  .amdhsa_next_free_sgpr 102
  .amdhsa_accum_offset {nv}
  .amdhsa_group_segment_fixed_size 0
  .amdhsa_kernarg_size 104
  .amdhsa_user_sgpr_count 2
  .amdhsa_user_sgpr_kernarg_segment_ptr 1
  .amdhsa_system_sgpr_workgroup_id_x 1
  .amdhsa_float_denorm_mode_32 3
.end_amdhsa_kernel
"""
    open(path,"w").write(txt)
    return n
if __name__=="__main__":
    from build import build
    p=f"h5.s"
    print("nops:",gen(p, verbose=True))
    print(build(p, NAME+"_kernel"))
```

```python
import sys, struct, math
sys.path.insert(0,"gen"); sys.path.insert(0,"exp")
from asmlib import Asm, pad, place_pads
NAME="gated_mix__sliding_block_cached__glu_gated_geglu__decode"
def f2u(x): return struct.unpack("<I", struct.pack("<f", x))[0]
LOG2E=f2u(math.log2(math.e)); SCALE=f2u(192**-0.5)
QG_BASE=0x1000; O_BASE=0x52000; F_BASE=0xA0000; STAMP_BASE=0x100000
DPP=" row_mask:0xf bank_mask:0xf"
X1="quad_perm:[1,0,3,2]"; X2="quad_perm:[2,3,0,1]"; HM="row_half_mirror"
L_SC=0; L_GATE=1536; L_CNT=1544; L_QB=1600; L_PD=2048
LDS=3584

def gen(path, kname=NAME+"_kernel", nt=True, stamps=False, pa=5, pb=10, spin=1<<16, warm=True, header=True,
        gb=3, fback=2, fthr=200, probe=None, fast=True, pretouch=True, verbose=False, outpre=True, nearly=0, osets=1):
    A=Asm()
    NT=" nt" if nt else ""
    def stamp(i):
        if stamps: A(f"s_memrealtime s[{60+2*i}:{61+2*i}]")
    masks="""v_mov_b32 v12, 0xffff
        v_mov_b32 v13, 0
        v_lshlrev_b64 v[12:13], v3, v[12:13]
        v_cmp_gt_u32 vcc, 4, v2
        s_nop 1
        v_cndmask_b32 v8, 0, v12, vcc
        v_cndmask_b32 v9, 0, v13, vcc
        v_cndmask_b32 v10, v12, 0, vcc
        v_cndmask_b32 v11, v13, 0, vcc"""
    def embed(r, tag="s42", ks=range(4)):
        for k in ks: A(f"v_mov_b32_sdwa v{r+k}, {tag} dst_sel:BYTE_0 dst_unused:UNUSED_PRESERVE src0_sel:BYTE_{k}")
    def fold(acc,tmp,tag="s42"):
        for k in range(4): A(f"v_permlane32_swap_b32 v{acc+k}, v{tmp+k}")
        for k in range(4): A(f"v_add_f32_dpp v{acc+k}, v{tmp+k}, v{acc+k} row_ror:8{DPP}")
        embed(acc,tag)
        A("s_mov_b64 exec, 0x00ff00ff")
    def cmpx(r,n=4):
        for k in range(n): A(f"v_cmpx_eq_u32_sdwa vcc, v{r+k}, s42 src0_sel:BYTE_0 src1_sel:BYTE_{k}")
    def checkq(r, t):
        A(f"v_xor_b32_sdwa v{t}, v{r+3}, s42 dst_sel:DWORD dst_unused:UNUSED_PAD src0_sel:BYTE_0 src1_sel:BYTE_3")
        A(f"v_xor_b32_sdwa v{t+1}, v{r+7}, s42 dst_sel:DWORD dst_unused:UNUSED_PAD src0_sel:BYTE_0 src1_sel:BYTE_3")
        A(";NOPAD{")
        cmpx(r,3); cmpx(r+4,3)
        A(f"v_cmpx_gt_u32 vcc, 8, v{t}\nv_cmpx_gt_u32 vcc, 8, v{t+1}")
        A("s_cmp_eq_u64 exec, -1\ns_mov_b64 exec, -1\n;NOPAD}")
    def poll2(name, PA, PB, t, wa, wb, reissue):
        A(f"s_waitcnt vmcnt({wa})")
        if PB is not None:
            checkq(PA,t)
            A(f"s_cbranch_scc1 L_{name}_ok")
            A(f"s_add_u32 s43, s43, 1\ns_waitcnt vmcnt({wb})")
            for k in range(4): A(f"v_mov_b64 v[{PA+2*k}:{PA+2*k+1}], v[{PB+2*k}:{PB+2*k+1}]")
        A(f"L_{name}_chk:")
        checkq(PA,t)
        A(f"s_cbranch_scc1 L_{name}_ok")
        reissue(PA)
        A(f"s_cmp_lg_u32 s43, 3\ns_cbranch_scc1 L_{name}_nowb\nbuffer_wbl2 sc1\nL_{name}_nowb:")
        A(f"s_add_u32 s43, s43, 1\ns_cmp_lt_u32 s43, {spin}\ns_waitcnt vmcnt(0)\ns_cbranch_scc1 L_{name}_chk")
        A(f"L_{name}_ok:")
        A(f"v_cmp_ne_u32 s[48:49], s46, v{t}")
        A(f"s_cmp_eq_u64 s[48:49], 0\ns_cbranch_scc1 L_{name}_loc\nbuffer_wbl2 sc1\nL_{name}_loc:")
    def bf16r(r):
        A(f"v_cvt_pk_bf16_f32 v{r}, v{r}, v{r}\nv_and_b32 v{r}, 0xffff0000, v{r}")
    def allred_oct(op, r, t):
        A(f"{op}_dpp v{r}, v{r}, v{r} row_ror:8{DPP}")
        A(f"v_mov_b32 v{t}, v{r}\nv_permlane16_swap_b32 v{r}, v{t}\n{op} v{r}, v{r}, v{t}")
        A(f"v_mov_b32 v{t}, v{r}\nv_permlane32_swap_b32 v{r}, v{t}\n{op} v{r}, v{r}, v{t}")
    def allred8(op, rs):
        for m in (X1,X2,HM):
            for r in rs: A(f"{op}_dpp v{r}, v{r}, v{r} {m}{DPP}")
    def red8regs(a, b):
        for k in range(4): A(f"v_add_f32_dpp v{b+k}, v{a+k}, v{a+k} row_ror:8 row_mask:0xf bank_mask:0x3")
        for k in range(4): A(f"v_add_f32_dpp v{b+k}, v{a+4+k}, v{a+4+k} row_ror:8 row_mask:0xf bank_mask:0xc")
        A(f"v_permlane16_swap_b32 v{b}, v{b+1}\nv_permlane16_swap_b32 v{b+2}, v{b+3}")
        A(f"v_add_f32 v{b}, v{b}, v{b+1}\nv_add_f32 v{b+2}, v{b+2}, v{b+3}")
        A(f"v_permlane32_swap_b32 v{b}, v{b+2}\nv_add_f32 v{b}, v{b}, v{b+2}")
    def abuild(dst, src, low):
        for d in range(4):
            own = (d<2)==low
            if own: A(f"v_and_b32 v{dst+d}, v{src}, v{8+d}")
            else: A(f"v_and_b32_dpp v{dst+d}, v{src}, v{8+d} {HM}{DPP}")

    A(f"{kname}:")
    stamp(0)
    A("""s_cmp_ge_u32 s2, 256
    s_cbranch_scc1 L_end
    s_load_dwordx16 s[16:31], s[0:1], 0
    s_load_dwordx8 s[32:39], s[0:1], 64
    s_load_dwordx2 s[40:41], s[0:1], 96
    v_lshrrev_b32 v1, 6, v0
    v_and_b32 v0, 63, v0
    v_readfirstlane_b32 s3, v1
    s_and_b32 s4, s2, 7
    s_lshr_b32 s5, s2, 6
    s_lshl3_add_u32 s4, s5, s4
    s_bfe_u32 s5, s2, 0x30003
    v_lshrrev_b32 v1, 3, v0
    v_and_b32 v2, 7, v0
    v_lshlrev_b32 v3, 4, v2
    s_mov_b32 s43, 0
    s_getreg_b32 s46, hwreg(HW_REG_XCC_ID, 0, 3)
    s_cmp_ge_u32 s3, 5
    s_cbranch_scc1 L_kv""")
    W0=24; A0=120; WO=72; WD=104; GX=72
    A(f"""s_setprio 1
    s_mul_i32 s7, s4, 3
    s_add_u32 s7, s7, s3
    s_movk_i32 s6, 0x3000
    s_cmp_lt_u32 s3, 3
    s_cselect_b32 s7, s7, s4
    s_cselect_b32 s6, s6, 0xc00
    s_mul_i32 s8, s5, 80
    v_mad_u32_u24 v5, v1, 10, s8
    v_mul_u32_u24 v4, s6, v5
    s_lshl_b32 s7, s7, 7
    v_add3_u32 v4, v4, v3, s7
    v_lshlrev_b32 v5, 1, v5
    s_cmp_ge_u32 s4, 24
    s_cselect_b32 s9, 3, 5
    s_lshl2_add_u32 s12, s5, s3
    s_cmp_eq_u32 s5, 7
    s_subb_u32 s12, s12, 0
    s_mul_i32 s13, s12, 43
    s_lshr_b32 s13, s13, 7
    s_mul_i32 s8, s13, 3
    s_sub_u32 s12, s12, s8
    s_movk_i32 s8, 10240
    v_mad_u32_u24 v22, v1, s8, v3
    s_lshl_b32 s10, s13, 7
    v_add_u32 v22, s10, v22
    s_cmp_lt_u32 s12, 2
    s_cselect_b32 s14, 2, 1
    s_cmp_ge_u32 s4, 24
    s_cselect_b32 s14, 1, s14
    s_cmp_lt_u32 s5, 6
    s_cselect_b32 s8, 4, 3
    s_cmp_ge_u32 s3, s8
    s_cselect_b32 s14, 0, s14
    v_mul_u32_u24 v7, 20, v0
    s_waitcnt lgkmcnt(0)
    s_cmp_lt_u32 s3, 3
    s_cselect_b64 s[26:27], s[22:23], s[28:29]
    s_cmp_lg_u32 s3, 4
    s_cbranch_scc1 L_nog1
    s_mov_b64 s[26:27], s[30:31]
    global_load_dwordx4 v[{GX}:{GX+3}], v7, s[16:17]
    global_load_dword v{GX+4}, v7, s[16:17] offset:16
    global_load_dwordx4 v[{GX+6}:{GX+9}], v7, s[34:35]
    global_load_dword v{GX+10}, v7, s[34:35] offset:16
    L_nog1:
    s_cmp_ge_u32 s3, s9
    s_cbranch_scc1 L_p_iss""")
    A("global_load_dwordx4 v[16:19], v5, s[16:17]")
    A("global_load_dword v20, v5, s[16:17] offset:16")
    for oc in range(10):
        A(f"global_load_dwordx4 v[{W0+4*oc}:{W0+4*oc+3}], v4, s[26:27]{NT}")
        if oc<9: A("v_add_u32 v4, s6, v4")
    A(f"""s_setprio 0
    s_cmp_lg_u32 s14, 2
    s_cbranch_scc1 L_p_iss
    s_lshl4_add_u32 s8, s4, s12
    s_mul_i32 s8, s8, {4*1280}
    v_add_u32 v4, s8, v22""")
    for k in range(4):
        if k: A("s_nop 0")
        A(f"global_load_dwordx4 v[{WD+4*k}:{WD+4*k+3}], v4, s[32:33] offset:{1280*k}{NT}")
    A("L_p_iss:")
    A("s_setprio 0\ns_load_dword s42, s[40:41], 0\ns_barrier")
    stamp(1)
    A("s_branch L_p")
    A("L_kv:")
    K0=16; V0=80; PA=144; PB=152; S=160
    A("s_sub_u32 s6, s3, 5")
    if warm:
        A(""";NOPAD{
        s_mov_b64 exec, 0
        s_cmp_eq_u32 s6, 1
        s_cbranch_scc1 L_t1
        s_cmp_eq_u32 s6, 2
        s_cbranch_scc1 L_t2
        s_branch L_t0
        L_back:
        s_mov_b64 exec, -1
        ;NOPAD}""")
    A(f"""s_mul_i32 s7, s4, 1572864
    s_mul_i32 s8, s5, 49152
    s_add_u32 s7, s7, s8
    s_lshl_b32 s8, s6, 7
    s_add_u32 s7, s7, s8
    s_add_u32 s7, s7, {3072*384+3072}
    s_movk_i32 s8, 6144
    v_mad_u32_u24 v4, v1, s8, v3
    v_add_u32 v4, s7, v4
    v_mov_b32 v183, 0
    ds_write_b32 v183, v183 offset:{L_CNT}
    s_waitcnt lgkmcnt(0)
    s_load_dword s42, s[40:41], 0""")
    stamp(12)
    A("s_barrier")
    fill=[l.strip() for l in (f"""s_mul_i32 s45, s4, 3
    s_add_u32 s45, s45, s6
    s_mul_i32 s45, s45, 3072
    s_add_u32 s45, s45, {O_BASE}
    s_mul_i32 s8, s5, 384
    s_add_u32 s8, s8, s45
    v_lshl_add_u32 v185, v0, 7, s8
    @PRE
    s_mul_i32 s8, s4, 10240
    s_lshl_b32 s10, s6, 11
    s_add_u32 s8, s8, s10
    s_add_u32 s8, s8, {QG_BASE}
    v_lshl_add_u32 v5, v1, 8, v3
    v_add_u32 v5, s8, v5
    """+masks+f"""
    s_lshl4_add_u32 s8, s5, s45
    v_bfe_u32 v176, v0, 4, 1
    v_lshl_add_u32 v6, v176, 3, v2
    v_lshl_add_u32 v6, v6, 7, s8
    v_lshrrev_b32 v177, 5, v0
    v_lshl_add_u32 v177, v177, 1, v176
    v_and_b32 v176, 1, v1
    v_lshl_add_u32 v177, v176, 2, v177
    s_lshl_b32 s8, s6, 7
    v_add_u32 v178, s8, v3
    v_lshl_add_u32 v177, v177, 1, v178
    s_lshl_b32 s8, s6, 9
    v_lshrrev_b32 v176, 2, v2
    v_lshlrev_b32 v182, 6, v1
    v_add_u32 v182, s8, v182
    v_lshl_add_u32 v179, v176, 5, v182
    v_lshlrev_b32 v180, 3, v0
    v_add_u32 v181, s8, v180
    v_mov_b32 v184, 1""").split("\n") if l.strip()]
    seq=[]
    def gap():
        if not fill: A("s_nop 0"); return
        for _ in range(2):
            if not fill: break
            l=fill.pop(0)
            if l=="@PRE":
                if pretouch: A("s_mov_b64 exec, 7\nglobal_load_dword v192, v185, s[40:41] sc1\ns_mov_b64 exec, -1"); seq.append("T")
            else: A(l)
    def qissue(r):
        A(f"global_load_dwordx4 v[{r}:{r+3}], v5, s[40:41] sc1\nglobal_load_dwordx4 v[{r+4}:{r+7}], v5, s[40:41] offset:128 sc1")
    for oc in range(16):
        A(f"global_load_dwordx4 v[{K0+4*oc}:{K0+4*oc+3}], v4, s[18:19] offset:{oc*384-3072}{NT}"); seq.append(f"K{oc}"); gap()
    stamp(1)
    for oc in range(17):
        if oc==pa: qissue(PA); seq+=["PA0","PA1"]; gap(); stamp(2)
        if oc==pb: qissue(PB); seq+=["PB0","PB1"]; gap()
        if oc<16:
            A(f"global_load_dwordx4 v[{V0+4*oc}:{V0+4*oc+3}], v4, s[20:21] offset:{oc*384-3072}{NT}"); seq.append(f"V{oc}")
            if oc<15: gap()
    assert not fill
    after=lambda n: len(seq)-1-seq.index(n)
    stamp(3)
    A("s_waitcnt lgkmcnt(0)\ns_barrier\ns_add_u32 s42, s42, 0x01010101\ns_branch L_kv2")
    A("L_p:")
    if warm:
        A(";NOPAD{\ns_mov_b64 exec, 0")
        for w in range(5): A(f"s_cmp_eq_u32 s3, {w}\ns_cbranch_scc1 L_t{3+w}")
        A("L_back2:\ns_mov_b64 exec, -1\n;NOPAD}")
    A(masks)
    A(f"""v_bfe_u32 v7, v0, 4, 1
    v_lshl_add_u32 v7, v7, 7, v3
    s_waitcnt lgkmcnt(0)
    s_add_u32 s42, s42, 0x01010101
    s_mul_i32 s44, s4, 10240
    s_add_u32 s44, s44, {QG_BASE}
    s_cmp_ge_u32 s3, s9
    s_cbranch_scc1 L_p_done
    s_lshl_b32 s47, s46, 24
    s_xor_b32 s47, s47, s42
    s_lshl3_add_u32 s8, s3, s5
    s_lshl_b32 s8, s8, 8
    s_add_u32 s8, s8, s44
    v_add_u32 v6, s8, v7
    s_mov_b32 s10, 0x01000100
    s_mov_b32 s11, 0x03020302
    s_waitcnt vmcnt(10)""")
    for oc in range(10):
        A(f"v_perm_b32 v21, v{16+oc//2}, v{16+oc//2}, s{10+(oc&1)}")
        for d in range(4): A(f"v_and_b32 v{A0+4*oc+d}, v21, v{8+d}")
    for oc in range(10):
        if oc==0: A("s_waitcnt vmcnt(4)")
        if oc==6: A("s_cmp_eq_u32 s14, 2\ns_cbranch_scc1 L_p_go\ns_waitcnt vmcnt(0)\nL_p_go:")
        A(f"v_mfma_f32_16x16x32_bf16 v[12:15], v[{A0+4*oc}:{A0+4*oc+3}], v[{W0+4*oc}:{W0+4*oc+3}], {'0' if oc==0 else 'v[12:15]'}")
    stamp(2)
    fold(12,16,"s47")
    A("global_store_dwordx4 v6, v[12:15], s[40:41]\ns_mov_b64 exec, -1")
    stamp(3)
    A("L_p_done:")
    A("v_mov_b32 v21, 0\ns_cmp_eq_u32 s14, 0\ns_cbranch_scc1 L_p_exit")
    A(f"""s_mul_i32 s15, s4, 3
    s_add_u32 s15, s15, s12
    s_mul_i32 s8, s15, {64*1280}
    s_add_u32 s8, s8, 3840
    v_add_u32 v4, s8, v22
    s_mul_i32 s8, s15, 3072
    s_add_u32 s8, s8, {O_BASE}
    v_lshl_add_u32 v5, v0, 4, s8
    s_lshl_b32 s8, s15, 8
    s_lshl_b32 s10, s13, 15
    s_add_u32 s8, s8, s10
    s_add_u32 s8, s8, {F_BASE}
    v_add_u32 v6, s8, v7
    s_lshr_b32 s51, s42, 8
    s_lshr_b32 s52, s42, 16
    s_lshr_b32 s53, s42, 24
    v_mov_b32 v16, 0
    v_mov_b32 v17, 0
    v_mov_b32 v18, 0
    v_mov_b32 v19, 0
    s_lshl_b32 s8, s12, 7
    s_add_u32 s8, s8, s44
    s_add_u32 s8, s8, {3*2048}
    v_lshlrev_b32 v20, 8, v2
    v_lshl_add_u32 v20, v1, 4, v20
    v_add_u32 v20, s8, v20""")
    stamp(4)
    A("s_barrier")
    stamp(5)
    GA=24; T=40
    def guissue(r, fl=" sc1"):
        A(f"global_load_dwordx4 v[{r}:{r+3}], v20, s[40:41]{fl}\nglobal_load_dwordx4 v[{r+4}:{r+7}], v20, s[40:41] offset:2048{fl}")
    A(f"ds_read_b64 v[22:23], v21 offset:{L_GATE}")
    A("s_cmp_lg_u32 s14, 2\ns_cbranch_scc1 L_nogu")
    guissue(GA,"")
    A("L_nogu:")
    for k in range(8):
        if k==7: A("v_add_u32 v4, 5120, v4")
        else: A("s_nop 0")
        A(f"global_load_dwordx4 v[{WO+4*k}:{WO+4*k+3}], v4, s[24:25] offset:{(1280*k-3840) if k<7 else 0}{NT}")
    stamp(6)
    A("s_cbranch_scc1 L_o_wait")
    poll2("gu",GA,None,T+4,8,0,guissue)
    stamp(7)
    for k in range(4): A(f"v_add_f32_dpp v{T+k}, v{GA+k}, v{GA+k} {HM} row_mask:0xf bank_mask:0x5")
    for k in range(4): A(f"v_add_f32_dpp v{T+k}, v{GA+4+k}, v{GA+4+k} {HM} row_mask:0xf bank_mask:0xa")
    for m in (X1,X2):
        for k in range(4): A(f"v_add_f32_dpp v{T+k}, v{T+k}, v{T+k} {m}{DPP}")
    C1=f2u(-2*math.sqrt(2/math.pi)*math.log2(math.e)); C3=f2u(0.044715)
    A(f"s_mov_b32 s8, 0xffff0000\ns_mov_b32 s10, {hex(C3)}\ns_mov_b32 s11, {hex(C1)}")
    U=T+4
    steps=[lambda g,t:f"v_cvt_pk_bf16_f32 v{g}, v{g}, v{g}", lambda g,t:f"v_and_b32 v{g}, s8, v{g}",
           lambda g,t:f"v_mul_f32 v{t}, v{g}, v{g}", lambda g,t:f"v_mul_f32 v{t}, s10, v{t}", lambda g,t:f"v_fma_f32 v{t}, v{t}, v{g}, v{g}",
           lambda g,t:f"v_mul_f32 v{t}, s11, v{t}", lambda g,t:f"v_exp_f32 v{t}, v{t}", lambda g,t:f"v_add_f32 v{t}, 1.0, v{t}",
           lambda g,t:f"v_rcp_f32 v{t}, v{t}", lambda g,t:f"v_mul_f32 v{t}, v{g}, v{t}", lambda g,t:f"v_cvt_pk_bf16_f32 v{t}, v{t}, v{t}",
           lambda g,t:f"v_and_b32 v{t}, s8, v{t}", lambda g,t:f"v_mul_f32_dpp v{t}, v{g}, v{t} {HM}{DPP}", lambda g,t:f"v_cvt_pk_bf16_f32 v{t}, v{t}, v{t}"]
    for st_ in steps:
        for k in range(4): A(st_(T+k,U+k))
    for k in range(4): abuild(48+4*k,U+k,True)
    for k in range(4): A(f"v_mfma_f32_16x16x32_bf16 v[16:19], v[{48+4*k}:{51+4*k}], v[{WD+4*k}:{WD+4*k+3}], {'0' if k==0 else 'v[16:19]'}")
    A("s_waitcnt lgkmcnt(0)")
    for k in range(4): A(f"v_mul_f32 v{16+k}, v{16+k}, v23")
    A("L_o_wait:")
    A("s_waitcnt lgkmcnt(0)")
    stamp(10)
    A("s_barrier")
    stamp(8)
    M=36; CK=37; R=40; W=120
    sets=[24,132][:osets]
    def oiss(r):
        A(f"""global_load_dwordx4 v[{r+8}:{r+11}], v5, s[40:41] offset:2048 sc1
        global_load_dwordx4 v[{r}:{r+3}], v5, s[40:41] sc1
        global_load_dwordx4 v[{r+4}:{r+7}], v5, s[40:41] offset:1024 sc1""")
    tg=["s42","s51","s52","s53"]
    def chk(r,k,first=False):
        if first: A(f"v_xor_b32 v{CK}, {tg[k]}, v{r+k}")
        else: A(f"v_bitop3_b32 v{CK}, v{CK}, v{r+k}, {tg[k]} bitop3:0xf6")
    def ocheck(OA, base):
        ML=OA+8
        A(f"s_waitcnt vmcnt({base+2})")
        A(f"v_max_f32_dpp v{M}, v{ML}, v{ML} {X1}{DPP}")
        chk(ML,0,True); chk(ML,1)
        A(f"v_max_f32_dpp v{M}, v{M}, v{M} {X2}{DPP}")
        chk(ML,2); chk(ML,3)
        A(f"v_max_f32_dpp v{M}, v{M}, v{M} {HM}{DPP}")
        A(f"v_sub_f32 v{M}, v{ML}, v{M}\nv_exp_f32 v{M}, v{M}")
        A(f"s_waitcnt vmcnt({base})")
        for r in (OA,OA+4):
            for k in range(4): chk(r,k)
        A(f"v_cmp_ne_u32_sdwa vcc, v{CK}, v21 src0_sel:BYTE_0 src1_sel:BYTE_0")
    def omul(OA):
        for k in range(8): A(f"v_mul_f32 v{W+k}, v{OA+k}, v{M}")
        A(f"v_mul_f32 v{W+8}, v{OA+9}, v{M}")
    if osets==1:
        A("L_o_loop:")
        oiss(sets[0])
        A(f"s_add_u32 s43, s43, 0x100\ns_cmp_ge_u32 s43, {spin*256}")
        ocheck(sets[0],0)
        A("s_cbranch_scc1 L_o_ok\ns_cbranch_vccnz L_o_loop\nL_o_ok:")
        stamp(11)
        omul(sets[0])
    else:
        oiss(sets[1]); A("s_sleep 3")
        A("L_o_loop:")
        oiss(sets[0])
        ocheck(sets[1],3)
        A("s_cbranch_vccnz L_o_b")
        stamp(11)
        omul(sets[1])
        A("s_branch L_o_ok2")
        A("L_o_b:")
        oiss(sets[1])
        A(f"s_add_u32 s43, s43, 0x100\ns_cmp_ge_u32 s43, {spin*256}")
        ocheck(sets[0],3)
        A("s_cbranch_scc1 L_o_ok\ns_cbranch_vccnz L_o_loop\nL_o_ok:")
        stamp(11)
        omul(sets[0])
        A("L_o_ok2:")
    for k in range(4): A(f"v_add_f32_dpp v{R+k}, v{W+k}, v{W+k} {HM} row_mask:0xf bank_mask:0x5")
    for k in range(4): A(f"v_add_f32_dpp v{R+k}, v{W+4+k}, v{W+4+k} {HM} row_mask:0xf bank_mask:0xa")
    for m in (X1,X2):
        for k in range(4): A(f"v_add_f32_dpp v{R+k}, v{R+k}, v{R+k} {m}{DPP}")
    for k in range(4): A(f"v_cvt_pk_bf16_f32 v{R+k}, v{R+k}, v{R+k}")
    LL=W+8
    extra=[f"v_add_f32_dpp v{LL}, v{LL}, v{LL} {m}{DPP}" for m in (X1,X2,HM)]+[f"v_rcp_f32 v{LL}, v{LL}", f"v_mul_f32 v22, v22, v{LL}"]
    AB=48
    for k in range(9):
        if k<8: abuild(AB+4*(k%3), R+(k&3), k<4)
        if k>=1:
            j=k-1
            if k==8: A(extra.pop(0))
            A(f"v_mfma_f32_16x16x32_bf16 v[12:15], v[{AB+4*(j%3)}:{AB+4*(j%3)+3}], v[{WO+4*j}:{WO+4*j+3}], {'0' if j==0 else 'v[12:15]'}")
    for e in extra: A(e)
    for k in range(4): A(f"v_fma_f32 v{12+k}, v{12+k}, v22, v{16+k}")
    fold(12,16)
    A("global_store_dwordx4 v6, v[12:15], s[40:41] sc1")
    stamp(9)
    if stamps: A("s_branch L_x3")
    A("s_endpgm")
    A("L_p_exit:")
    A("s_cmp_lg_u32 s3, 4\ns_cbranch_scc1 L_x1")
    G0=30
    A(f"s_cmp_lt_u32 s4, 24\ns_cbranch_scc1 L_g3\ns_waitcnt vmcnt(0)\nL_g3:\nv_mov_b32 v{G0}, 0\ns_mov_b32 s8, 0xffff0000")
    for k in range(5):
        a,b,c,d=G0+2,G0+3,G0+4,G0+5
        A(f"""v_lshlrev_b32 v{a}, 16, v{GX+k}
        v_and_b32 v{b}, s8, v{GX+k}
        v_lshlrev_b32 v{c}, 16, v{GX+6+k}
        v_and_b32 v{d}, s8, v{GX+6+k}
        v_pk_mul_f32 v[{a}:{b}], v[{a}:{b}], v[{c}:{d}]
        v_cvt_pk_bf16_f32 v{a}, v{a}, v{b}
        v_lshlrev_b32 v{b}, 16, v{a}
        v_and_b32 v{a}, s8, v{a}
        v_add_f32 v{G0}, v{G0}, v{b}
        v_add_f32 v{G0}, v{G0}, v{a}""")
    allred8("v_add_f32",[G0]); allred_oct("v_add_f32",G0,G0+1)
    bf16r(G0)
    A(f"""v_mul_f32 v{G0}, {hex(f2u(-math.log2(math.e)))}, v{G0}
    v_exp_f32 v{G0}, v{G0}
    v_add_f32 v{G0}, 1.0, v{G0}
    v_rcp_f32 v{G0}, v{G0}""")
    bf16r(G0)
    A(f"v_sub_f32 v{G0+1}, 1.0, v{G0}")
    bf16r(G0+1)
    A(f"ds_write_b64 v21, v[{G0}:{G0+1}] offset:{L_GATE}\ns_waitcnt lgkmcnt(0)")
    A("L_x1:\ns_barrier")
    if stamps: A("s_branch L_x2")
    A("s_endpgm")
    A(";NEWBLOCK")
    A("L_kv2:")
    stamp(4)
    poll2("q",PA,PB,S+4,after('PA1'),after('PB1'),qissue)
    stamp(5)
    red8regs(PA,S)
    A(f"""v_cvt_pk_bf16_f32 v{S}, v{S}, v{S}
    ds_write_b16 v177, v{S} offset:{L_QB}
    ds_read_b128 v[12:15], v178 offset:{L_QB}
    s_waitcnt lgkmcnt(0)""")
    for oc in range(16): A(f"v_dot2_f32_bf16 v{S+oc}, v{K0+4*oc}, v12, 0")
    for d in range(1,4):
        for oc in range(16): A(f"v_dot2c_f32_bf16 v{S+oc}, v{K0+4*oc+d}, v{12+d}")
    T=PA
    for k in range(8): A(f"v_add_f32_dpp v{T+k}, v{S+k}, v{S+k} {HM} row_mask:0xf bank_mask:0x5")
    for k in range(8): A(f"v_add_f32_dpp v{T+k}, v{S+8+k}, v{S+8+k} {HM} row_mask:0xf bank_mask:0xa")
    for m in (X1,X2):
        for k in range(8): A(f"v_add_f32_dpp v{T+k}, v{T+k}, v{T+k} {m}{DPP}")
    A(f"""s_mov_b32 exec_lo, 0x11111111
    s_mov_b32 exec_hi, 0x11111111
    ds_write_b128 v179, v[{T}:{T+3}]
    ds_write_b128 v179, v[{T+4}:{T+7}] offset:16
    s_mov_b64 exec, 1
    ds_add_u32 v183, v184 offset:{L_CNT}
    s_mov_b64 exec, -1""")
    stamp(6)
    A("L_sc:")
    A(f"""ds_read_b32 v16, v183 offset:{L_CNT}
    ds_read_b64 v[18:19], v180
    ds_read_b64 v[20:21], v180 offset:512
    ds_read_b64 v[22:23], v180 offset:1024
    s_waitcnt lgkmcnt(3)
    v_readfirstlane_b32 s8, v16
    s_cmp_lt_u32 s8, 3
    s_waitcnt lgkmcnt(0)
    s_cbranch_scc1 L_sc""")
    stamp(7)
    A(f"""v_add_f32 v18, v18, v20
    v_add_f32 v19, v19, v21
    v_add_f32 v18, v18, v22
    v_add_f32 v19, v19, v23
    v_cvt_pk_bf16_f32 v18, v18, v19
    v_and_b32 v19, 0xffff0000, v18
    v_lshlrev_b32 v18, 16, v18
    v_mul_f32 v18, {hex(SCALE)}, v18
    v_mul_f32 v19, {hex(SCALE)}, v19
    v_cvt_pk_bf16_f32 v18, v18, v19
    v_and_b32 v19, 0xffff0000, v18
    v_lshlrev_b32 v18, 16, v18
    v_mul_f32 v18, {hex(LOG2E)}, v18
    v_mul_f32 v19, {hex(LOG2E)}, v19
    v_max_f32 v188, v18, v19""")
    allred8("v_max_f32",[188]); allred_oct("v_max_f32",188,20)
    embed(188,ks=[0])
    A(f"""v_sub_f32 v18, v18, v188
    v_sub_f32 v19, v19, v188
    v_exp_f32 v18, v18
    v_exp_f32 v19, v19
    v_cvt_pk_bf16_f32 v20, v18, v18
    v_cvt_pk_bf16_f32 v21, v19, v19
    ds_write_b64 v181, v[20:21] offset:{L_PD}""")
    for j in range(4): A(f"ds_read_b128 v[{S+4*j}:{S+4*j+3}], v182 offset:{L_PD+16*j}")
    A("v_add_f32 v189, v18, v19")
    allred8("v_add_f32",[189]); allred_oct("v_add_f32",189,20)
    embed(188,ks=[1,2,3])
    A("s_waitcnt lgkmcnt(0)")
    stamp(8)
    for oc in range(17):
        if oc<16:
            for d in range(4): A(f"v_and_b32 v{K0+4*oc+d}, v{S+oc}, v{8+d}")
        if 1<=oc<=8:
            k=oc-1; n=after('V%d'%k)
            if n<after('PA1'): A(f"s_waitcnt vmcnt({n})")
            A(f"v_mfma_f32_16x16x32_bf16 v[12:15], v[{K0+4*k}:{K0+4*k+3}], v[{V0+4*k}:{V0+4*k+3}], {'0' if k==0 else 'v[12:15]'}")
    for k in range(8,16):
        n=after('V%d'%k)
        if n<after('PA1'): A(f"s_waitcnt vmcnt({n})")
        A(f"v_mfma_f32_16x16x32_bf16 v[12:15], v[{K0+4*k}:{K0+4*k+3}], v[{V0+4*k}:{V0+4*k+3}], v[12:15]")
    stamp(9)
    A("s_mov_b64 exec, 0xff")
    if fast:
        A("s_cmp_lg_u64 s[48:49], 0\ns_cbranch_scc1 L_slowpub")
        A("global_store_dwordx4 v6, v[188:191], s[40:41] offset:2048\ns_mov_b64 exec, -1")
        fold(12,PA)
        A("global_store_dwordx4 v6, v[12:15], s[40:41]")
    else:
        A("global_store_dwordx4 v6, v[188:191], s[40:41] offset:2048 sc1\ns_mov_b64 exec, -1")
        fold(12,PA)
        A("global_store_dwordx4 v6, v[12:15], s[40:41] sc1")
    A("L_pubdone:")
    stamp(10)
    A("s_barrier")
    A(f"""s_cmp_lg_u32 s3, 6
    s_cbranch_scc1 L_x3
    s_cmp_lt_u32 s4, 24
    s_cbranch_scc1 L_x3
    s_lshr_b32 s10, s5, 2
    s_lshl3_add_u32 s8, s10, s4
    s_sub_u32 s8, s8, 24
    s_cmp_ge_u32 s8, 10
    s_cbranch_scc1 L_x3
    s_mov_b64 exec, -1
    s_and_b32 s11, s5, 3
    s_lshl_b32 s10, s8, 15
    s_lshl_b32 s12, s11, 6
    s_add_u32 s10, s10, s12
    s_add_u32 s10, s10, {F_BASE+4096}
    v_and_b32 v22, 3, v0
    v_lshrrev_b32 v19, 2, v0
    v_lshlrev_b32 v19, 8, v19
    v_lshl_add_u32 v19, v22, 4, v19
    v_add_u32 v16, s10, v19
    v_add_u32 v17, 0x2000, v16
    v_add_u32 v18, 0x4000, v16
    s_lshl_b32 s15, s8, 7
    s_and_b32 s12, s11, 1
    s_lshl_b32 s12, s12, 6
    s_add_u32 s15, s15, s12
    s_lshr_b32 s12, s11, 1
    s_lshl3_add_u32 s15, s12, s15
    v_bfe_u32 v20, v0, 4, 1
    v_lshrrev_b32 v21, 5, v0
    v_lshl_add_u32 v20, v20, 1, v21
    v_lshl_add_u32 v20, v22, 3, v20
    v_lshl_add_u32 v20, v20, 1, s15""")
    MK=["s[6:7]","s[8:9]","s[10:11]","s[12:13]","s[44:45]","s[48:49]"]
    for i in range(6): A(f"s_mov_b64 {MK[i]}, -1")
    A("s_barrier")
    stamp(11)
    if outpre: A("global_load_ushort v60, v20, s[36:37] sc1")
    A(";NOPAD{")
    A("L_f_loop:")
    for i in range(6):
        A(f"""s_mov_b64 exec, {MK[i]}
        s_cbranch_execz L_f{i}
        global_load_dwordx4 v[{32+4*i}:{35+4*i}], v{16+i//2}, s[40:41] offset:{-4096 if i%2==0 else 0} sc1
        L_f{i}:""")
    A("s_add_u32 s43, s43, 0x10000\ns_mov_b64 s[54:55], 0\ns_waitcnt vmcnt(0)")
    for i in range(6):
        A(f"s_mov_b64 exec, {MK[i]}\ns_cbranch_execz L_g{i}")
        cmpx(32+4*i)
        A(f"s_andn2_b64 {MK[i]}, {MK[i]}, exec\ns_or_b64 s[54:55], s[54:55], {MK[i]}\nL_g{i}:".replace("L_g","L_h"))
        A.L[:] = [l.replace(f"s_cbranch_execz L_g{i}", f"s_cbranch_execz L_h{i}") for l in A.L]
    A(f"""s_cmp_eq_u64 s[54:55], 0
    s_cbranch_scc1 L_f_ok
    s_cmp_lt_u32 s43, 0xf0000000
    s_cbranch_scc1 L_f_loop
    L_f_ok:
    s_mov_b64 exec, -1""")
    A(";NOPAD}")
    stamp(13)
    for j in range(3):
        for k in range(2): A(f"v_pk_add_f32 v[{32+8*j+2*k}:{33+8*j+2*k}], v[{32+8*j+2*k}:{33+8*j+2*k}], v[{36+8*j+2*k}:{37+8*j+2*k}]")
    for j in (1,2):
        for k in range(2): A(f"v_pk_add_f32 v[{32+2*k}:{33+2*k}], v[{32+2*k}:{33+2*k}], v[{32+8*j+2*k}:{33+8*j+2*k}]")
    A("""v_permlane32_swap_b32 v32, v33
    v_permlane32_swap_b32 v34, v35
    v_add_f32 v32, v32, v33
    v_add_f32 v34, v34, v35
    v_permlane16_swap_b32 v32, v34
    v_add_f32 v32, v32, v34""")
    for m in ("row_ror:8","row_ror:4"): A(f"v_add_f32_dpp v32, v32, v32 {m}{DPP}")
    A("""v_cvt_pk_bf16_f32 v32, v32, v32
    s_mov_b32 exec_lo, 0x000f000f
    s_mov_b32 exec_hi, 0x000f000f
    global_store_short v20, v32, s[36:37]
    s_cmp_lg_u32 s15, 0
    s_cbranch_scc1 L_fin
    s_mov_b64 exec, 1
    v_mov_b32 v26, s42
    global_store_dword v20, v26, s[40:41]""")
    if stamps: A("s_branch L_fin\nL_x2:\ns_barrier\nL_x3:\ns_barrier")
    else: A("L_x3:")
    A("L_fin:")
    stamp(14)
    if stamps:
        A("s_mov_b64 exec, -1")
        A("s_waitcnt lgkmcnt(0)")
        if probe is not None:
            lo,hi,st,sign,wgsel=probe
            A("v_mov_b32 v251, 0\ns_or_b32 s98, s2, s3\ns_cbranch_scc1 L_dbgd\nv_mov_b32 v250, s60\nglobal_store_dword v251, v250, s[38:39] sc1\nL_dbgd:")
            A(f"s_cmp_lt_u32 s3, {lo}\ns_cbranch_scc1 L_end\ns_cmp_gt_u32 s3, {hi}\ns_cbranch_scc1 L_end")
            if wgsel is not None: A(f"s_cmp_lg_u32 s2, {wgsel}\ns_cbranch_scc1 L_end")
            A(f"L_dbgw:\ns_sleep 32\ns_memrealtime s[96:97]\ns_waitcnt lgkmcnt(0)\ns_sub_u32 s96, s96, s60\ns_cmp_lt_u32 s96, 3500\ns_cbranch_scc1 L_dbgw")
            A("global_load_dword v250, v251, s[38:39] sc1\ns_waitcnt vmcnt(0)\nv_readfirstlane_b32 s95, v250")
            A(f"s_sub_u32 s94, s{60+2*st}, s95\ns_mul_i32 s94, s94, {10*sign}\ns_add_u32 s94, s94, {6000 if sign>=0 else 30000}")
            A(f"s_min_u32 s94, s94, 50000")
            A(f"L_dbgx:\ns_sleep 2\ns_memrealtime s[96:97]\ns_waitcnt lgkmcnt(0)\ns_sub_u32 s96, s96, s95\ns_cmp_lt_u32 s96, s94\ns_cbranch_scc1 L_dbgx")
        else:
            A("L_dbgw:\ns_sleep 32\ns_memrealtime s[96:97]\ns_waitcnt lgkmcnt(0)\ns_sub_u32 s96, s96, s60\ns_cmp_lt_u32 s96, 1500\ns_cbranch_scc1 L_dbgw")
            for i in range(16): A(f"v_writelane_b32 v250, s{60+2*i}, {i}")
            A("v_writelane_b32 v250, s46, 16")
            A("v_writelane_b32 v250, s43, 17")
            A("s_getreg_b32 s98, hwreg(HW_REG_HW_ID)")
            A("v_writelane_b32 v250, s98, 18")
            A("s_lshl_b32 s98, s2, 3\ns_add_u32 s98, s98, s3\ns_lshl_b32 s98, s98, 8")
            A(f"s_add_u32 s98, s98, {STAMP_BASE}")
            A("v_lshl_add_u32 v251, v0, 2, s98")
            A("global_store_dword v251, v250, s[40:41]")
    A("L_end:")
    A("s_endpgm")
    if fast:
        A("L_slowpub:")
        A("global_store_dwordx4 v6, v[188:191], s[40:41] offset:2048 sc1\ns_mov_b64 exec, -1\ns_nop 4")
        fold(12,PA)
        A("global_store_dwordx4 v6, v[12:15], s[40:41] sc1\ns_branch L_pubdone")
    body,n=pad(A.L)
    if warm:
        body,pads=place_pads(body, entry_off=0, verbose=verbose, target=lambda k,N: "L_back" if k<3 else "L_back2")
        assert len(pads)<=8
        i=body.index("L_back2:")
        for k in range(len(pads),8): body.insert(i, f"L_t{k}:")
    nv = 256 if stamps else 200
    hdr=open(f"cdna_kernels/{NAME}.s.ref").read().split("; Override launch")[0] if header else ""
    txt=hdr+f"""; @launch grid=(256,1,1) block=(512,1,1) lds={LDS}
.amdgcn_target "amdgcn-amd-amdhsa--gfx950"
.text
.globl {kname}
.p2align 12
.fill 832, 4, 0xbf800000
.p2align 8
.type {kname},@function
"""+"\n".join(body)+f"""
.section .rodata,"a"
.p2align 6
.amdhsa_kernel {kname}
  .amdhsa_next_free_vgpr {nv}
  .amdhsa_next_free_sgpr 102
  .amdhsa_accum_offset {nv}
  .amdhsa_group_segment_fixed_size 0
  .amdhsa_kernarg_size 104
  .amdhsa_user_sgpr_count 2
  .amdhsa_user_sgpr_kernarg_segment_ptr 1
  .amdhsa_system_sgpr_workgroup_id_x 1
  .amdhsa_float_denorm_mode_32 3
.end_amdhsa_kernel
"""
    open(path,"w").write(txt)
    return n
if __name__=="__main__":
    from build import build
    p=f"h6.s"
    print("nops:",gen(p, verbose=True))
    print(build(p, NAME+"_kernel"))
```

```python
import sys, struct, math
sys.path.insert(0,"gen"); sys.path.insert(0,"exp")
from asmlib import Asm, pad, place_pads
NAME="gated_mix__sliding_block_cached__glu_gated_geglu__decode"
def f2u(x): return struct.unpack("<I", struct.pack("<f", x))[0]
LOG2E=f2u(math.log2(math.e)); SCALE=f2u(192**-0.5)
QG_BASE=0x1000; O_BASE=0x52000; F_BASE=0xA0000; STAMP_BASE=0x100000
DPP=" row_mask:0xf bank_mask:0xf"
X1="quad_perm:[1,0,3,2]"; X2="quad_perm:[2,3,0,1]"; HM="row_half_mirror"
L_SC=0; L_GATE=1536; L_CNT=1544; L_QB=1600; L_PD=2048; L_HD=3584
LDS=3584+1024

def gen(path, kname=NAME+"_kernel", nt=True, stamps=False, pa=5, pb=10, spin=1<<16, warm=True, header=True,
        olsleep=0, fback=3, fthr=24, gupos=0, probe=None, fast=True, pretouch=True, verbose=False, outpre=True, osets=2, skip='', fdepth=2, fgap=0):
    A=Asm()
    NT=" nt" if nt else ""
    def stamp(i):
        if stamps: A(f"s_memrealtime s[{60+2*i}:{61+2*i}]")
    masks="""v_mov_b32 v12, 0xffff
        v_mov_b32 v13, 0
        v_lshlrev_b64 v[12:13], v3, v[12:13]
        v_cmp_gt_u32 vcc, 4, v2
        s_nop 1
        v_cndmask_b32 v8, 0, v12, vcc
        v_cndmask_b32 v9, 0, v13, vcc
        v_cndmask_b32 v10, v12, 0, vcc
        v_cndmask_b32 v11, v13, 0, vcc"""
    def embed(r, tag="s42", ks=range(4)):
        for k in ks: A(f"v_mov_b32_sdwa v{r+k}, {tag} dst_sel:BYTE_0 dst_unused:UNUSED_PRESERVE src0_sel:BYTE_{k}")
    def fold(acc,tmp,tag="s42"):
        for k in range(4): A(f"v_permlane32_swap_b32 v{acc+k}, v{tmp+k}")
        for k in range(4): A(f"v_add_f32_dpp v{acc+k}, v{tmp+k}, v{acc+k} row_ror:8{DPP}")
        embed(acc,tag)
        A("s_mov_b64 exec, 0x00ff00ff")
    def cmpx(r,n=4):
        for k in range(n): A(f"v_cmpx_eq_u32_sdwa vcc, v{r+k}, s42 src0_sel:BYTE_0 src1_sel:BYTE_{k}")
    def checkq(r, t):
        A(f"v_xor_b32_sdwa v{t}, v{r+3}, s42 dst_sel:DWORD dst_unused:UNUSED_PAD src0_sel:BYTE_0 src1_sel:BYTE_3")
        A(f"v_xor_b32_sdwa v{t+1}, v{r+7}, s42 dst_sel:DWORD dst_unused:UNUSED_PAD src0_sel:BYTE_0 src1_sel:BYTE_3")
        A(";NOPAD{")
        cmpx(r,3); cmpx(r+4,3)
        A(f"v_cmpx_gt_u32 vcc, 8, v{t}\nv_cmpx_gt_u32 vcc, 8, v{t+1}")
        A("s_cmp_eq_u64 exec, -1\ns_mov_b64 exec, -1\n;NOPAD}")
    def poll2(name, PA, PB, t, wa, wb, reissue):
        A(f"s_waitcnt vmcnt({wa})")
        if PB is not None:
            checkq(PA,t)
            A(f"s_cbranch_scc1 L_{name}_ok")
            A(f"s_add_u32 s43, s43, 1\ns_waitcnt vmcnt({wb})")
            for k in range(4): A(f"v_mov_b64 v[{PA+2*k}:{PA+2*k+1}], v[{PB+2*k}:{PB+2*k+1}]")
        A(f"L_{name}_chk:")
        checkq(PA,t)
        A(f"s_cbranch_scc1 L_{name}_ok")
        reissue(PA)
        A(f"s_cmp_lg_u32 s43, 3\ns_cbranch_scc1 L_{name}_nowb\nbuffer_wbl2 sc1\nL_{name}_nowb:")
        A(f"s_add_u32 s43, s43, 1\ns_cmp_lt_u32 s43, {spin}\ns_waitcnt vmcnt(0)\ns_cbranch_scc1 L_{name}_chk")
        A(f"L_{name}_ok:")
        A(f"v_cmp_ne_u32 s[48:49], s46, v{t}")
        A(f"s_cmp_eq_u64 s[48:49], 0\ns_cbranch_scc1 L_{name}_loc\nbuffer_wbl2 sc1\nL_{name}_loc:")
    def bf16r(r):
        A(f"v_cvt_pk_bf16_f32 v{r}, v{r}, v{r}\nv_and_b32 v{r}, 0xffff0000, v{r}")
    def allred_oct(op, r, t):
        A(f"{op}_dpp v{r}, v{r}, v{r} row_ror:8{DPP}")
        A(f"v_mov_b32 v{t}, v{r}\nv_permlane16_swap_b32 v{r}, v{t}\n{op} v{r}, v{r}, v{t}")
        A(f"v_mov_b32 v{t}, v{r}\nv_permlane32_swap_b32 v{r}, v{t}\n{op} v{r}, v{r}, v{t}")
    def allred8(op, rs):
        for m in (X1,X2,HM):
            for r in rs: A(f"{op}_dpp v{r}, v{r}, v{r} {m}{DPP}")
    def red8regs(a, b):
        for k in range(4): A(f"v_add_f32_dpp v{b+k}, v{a+k}, v{a+k} row_ror:8 row_mask:0xf bank_mask:0x3")
        for k in range(4): A(f"v_add_f32_dpp v{b+k}, v{a+4+k}, v{a+4+k} row_ror:8 row_mask:0xf bank_mask:0xc")
        A(f"v_permlane16_swap_b32 v{b}, v{b+1}\nv_permlane16_swap_b32 v{b+2}, v{b+3}")
        A(f"v_add_f32 v{b}, v{b}, v{b+1}\nv_add_f32 v{b+2}, v{b+2}, v{b+3}")
        A(f"v_permlane32_swap_b32 v{b}, v{b+2}\nv_add_f32 v{b}, v{b}, v{b+2}")
    def abuild(dst, src, low):
        for d in range(4):
            own = (d<2)==low
            if own: A(f"v_and_b32 v{dst+d}, v{src}, v{8+d}")
            else: A(f"v_and_b32_dpp v{dst+d}, v{src}, v{8+d} {HM}{DPP}")

    A(f"{kname}:")
    stamp(0)
    A("""s_cmp_ge_u32 s2, 256
    s_cbranch_scc1 L_end
    s_load_dwordx16 s[16:31], s[0:1], 0
    s_load_dwordx8 s[32:39], s[0:1], 64
    s_load_dwordx2 s[40:41], s[0:1], 96
    v_lshrrev_b32 v1, 6, v0
    v_and_b32 v0, 63, v0
    v_readfirstlane_b32 s3, v1
    s_and_b32 s4, s2, 7
    s_lshr_b32 s5, s2, 6
    s_lshl3_add_u32 s4, s5, s4
    s_bfe_u32 s5, s2, 0x30003
    v_lshrrev_b32 v1, 3, v0
    v_and_b32 v2, 7, v0
    v_lshlrev_b32 v3, 4, v2
    s_mov_b32 s43, 0
    s_getreg_b32 s46, hwreg(HW_REG_XCC_ID, 0, 3)
    s_cmp_ge_u32 s3, 5
    s_cbranch_scc1 L_kv""")
    W0=24; A0=120; WO=72; WD=104; GX=72
    A(f"""s_setprio 1
    s_mul_i32 s7, s4, 3
    s_add_u32 s7, s7, s3
    s_movk_i32 s6, 0x3000
    s_cmp_lt_u32 s3, 3
    s_cselect_b32 s7, s7, s4
    s_cselect_b32 s6, s6, 0xc00
    s_mul_i32 s8, s5, 80
    v_mad_u32_u24 v5, v1, 10, s8
    v_mul_u32_u24 v4, s6, v5
    s_lshl_b32 s7, s7, 7
    v_add3_u32 v4, v4, v3, s7
    v_lshlrev_b32 v5, 1, v5
    s_cmp_ge_u32 s4, 24
    s_cselect_b32 s9, 3, 5
    s_lshl2_add_u32 s12, s5, s3
    s_cmp_eq_u32 s5, 7
    s_subb_u32 s12, s12, 0
    s_mul_i32 s13, s12, 43
    s_lshr_b32 s13, s13, 7
    s_mul_i32 s8, s13, 3
    s_sub_u32 s12, s12, s8
    s_movk_i32 s8, 10240
    v_mad_u32_u24 v22, v1, s8, v3
    s_lshl_b32 s10, s13, 7
    v_add_u32 v22, s10, v22
    s_cmp_lt_u32 s12, 2
    s_cselect_b32 s14, 2, 1
    s_cmp_ge_u32 s4, 24
    s_cselect_b32 s14, 1, s14
    s_cmp_lt_u32 s5, 6
    s_cselect_b32 s8, 4, 3
    s_cmp_ge_u32 s3, s8
    s_cselect_b32 s14, 0, s14
    v_mul_u32_u24 v7, 20, v0
    s_waitcnt lgkmcnt(0)
    s_cmp_lt_u32 s3, 3
    s_cselect_b64 s[26:27], s[22:23], s[28:29]
    s_cmp_lg_u32 s3, 4
    s_cbranch_scc1 L_nog1
    s_mov_b64 s[26:27], s[30:31]
    global_load_dwordx4 v[{GX}:{GX+3}], v7, s[16:17]
    global_load_dword v{GX+4}, v7, s[16:17] offset:16
    global_load_dwordx4 v[{GX+6}:{GX+9}], v7, s[34:35]
    global_load_dword v{GX+10}, v7, s[34:35] offset:16
    L_nog1:
    s_cmp_ge_u32 s3, s9
    s_cbranch_scc1 L_p_iss""")
    A("global_load_dwordx4 v[16:19], v5, s[16:17]")
    A("global_load_dword v20, v5, s[16:17] offset:16")
    for oc in range(10):
        A(f"global_load_dwordx4 v[{W0+4*oc}:{W0+4*oc+3}], v4, s[26:27]{NT}")
        if oc<9: A("v_add_u32 v4, s6, v4")
    A(f"""s_setprio 0
    s_cmp_lg_u32 s14, 2
    s_cbranch_scc1 L_p_iss
    s_lshl4_add_u32 s8, s4, s12
    s_mul_i32 s8, s8, {4*1280}
    v_add_u32 v4, s8, v22""")
    for k in range(4):
        if k: A("s_nop 0")
        A(f"global_load_dwordx4 v[{WD+4*k}:{WD+4*k+3}], v4, s[32:33] offset:{1280*k}{NT}")
    A("L_p_iss:")
    A("s_setprio 0\ns_load_dword s42, s[40:41], 0\ns_barrier")
    stamp(1)
    A("s_branch L_p")
    A("L_kv:")
    K0=16; V0=80; PA=144; PB=152; S=160
    A("s_sub_u32 s6, s3, 5")
    if warm:
        A(""";NOPAD{
        s_mov_b64 exec, 0
        s_cmp_eq_u32 s6, 1
        s_cbranch_scc1 L_t1
        s_cmp_eq_u32 s6, 2
        s_cbranch_scc1 L_t2
        s_branch L_t0
        L_back:
        s_mov_b64 exec, -1
        ;NOPAD}""")
    A(f"""s_mul_i32 s7, s4, 1572864
    s_mul_i32 s8, s5, 49152
    s_add_u32 s7, s7, s8
    s_lshl_b32 s8, s6, 7
    s_add_u32 s7, s7, s8
    s_add_u32 s7, s7, {3072*384+3072}
    s_movk_i32 s8, 6144
    v_mad_u32_u24 v4, v1, s8, v3
    v_add_u32 v4, s7, v4
    v_mov_b32 v183, 0
    v_mov_b32 v182, 0
    ds_write_b64 v183, v[182:183] offset:{L_CNT}
    s_waitcnt lgkmcnt(0)
    s_load_dword s42, s[40:41], 0""")
    stamp(12)
    A("s_barrier")
    fill=[l.strip() for l in (f"""s_mul_i32 s45, s4, 3
    s_add_u32 s45, s45, s6
    s_mul_i32 s45, s45, 3072
    s_add_u32 s45, s45, {O_BASE}
    s_mul_i32 s8, s5, 384
    s_add_u32 s8, s8, s45
    v_lshl_add_u32 v185, v0, 7, s8
    @PRE
    s_mul_i32 s8, s4, 10240
    s_lshl_b32 s10, s6, 11
    s_add_u32 s8, s8, s10
    s_add_u32 s8, s8, {QG_BASE}
    v_lshl_add_u32 v5, v1, 8, v3
    v_add_u32 v5, s8, v5
    """+masks+f"""
    s_lshl4_add_u32 s8, s5, s45
    v_bfe_u32 v176, v0, 4, 1
    v_lshl_add_u32 v6, v176, 3, v2
    v_lshl_add_u32 v6, v6, 7, s8
    v_lshrrev_b32 v177, 5, v0
    v_lshl_add_u32 v177, v177, 1, v176
    v_and_b32 v176, 1, v1
    v_lshl_add_u32 v177, v176, 2, v177
    s_lshl_b32 s8, s6, 7
    v_add_u32 v178, s8, v3
    v_lshl_add_u32 v177, v177, 1, v178
    s_lshl_b32 s8, s6, 9
    v_lshrrev_b32 v176, 2, v2
    v_lshlrev_b32 v182, 6, v1
    v_add_u32 v182, s8, v182
    v_lshl_add_u32 v179, v176, 5, v182
    v_lshlrev_b32 v180, 3, v0
    v_add_u32 v181, s8, v180
    v_mov_b32 v184, 1""").split("\n") if l.strip()]
    seq=[]
    def gap():
        if not fill: A("s_nop 0"); return
        for _ in range(2):
            if not fill: break
            l=fill.pop(0)
            if l=="@PRE":
                if pretouch: A("s_mov_b64 exec, 7\nglobal_load_dword v192, v185, s[40:41] sc1\ns_mov_b64 exec, -1"); seq.append("T")
            else: A(l)
    def qissue(r):
        A(f"global_load_dwordx4 v[{r}:{r+3}], v5, s[40:41] sc1\nglobal_load_dwordx4 v[{r+4}:{r+7}], v5, s[40:41] offset:128 sc1")
    for oc in range(16):
        A(f"global_load_dwordx4 v[{K0+4*oc}:{K0+4*oc+3}], v4, s[18:19] offset:{oc*384-3072}{NT}"); seq.append(f"K{oc}"); gap()
    stamp(1)
    for oc in range(17):
        if oc==pa: qissue(PA); seq+=["PA0","PA1"]; gap(); stamp(2)
        if oc==pb: qissue(PB); seq+=["PB0","PB1"]; gap()
        if oc<16:
            A(f"global_load_dwordx4 v[{V0+4*oc}:{V0+4*oc+3}], v4, s[20:21] offset:{oc*384-3072}{NT}"); seq.append(f"V{oc}")
            if oc<15: gap()
    assert not fill
    after=lambda n: len(seq)-1-seq.index(n)
    stamp(3)
    A("s_waitcnt lgkmcnt(0)\ns_barrier\ns_add_u32 s42, s42, 0x01010101\ns_branch L_kv2")
    A("L_p:")
    if warm:
        A(";NOPAD{\ns_mov_b64 exec, 0")
        for w in range(5): A(f"s_cmp_eq_u32 s3, {w}\ns_cbranch_scc1 L_t{3+w}")
        A("L_back2:\ns_mov_b64 exec, -1\n;NOPAD}")
    A(masks)
    A(f"""v_bfe_u32 v7, v0, 4, 1
    v_lshl_add_u32 v7, v7, 7, v3
    s_waitcnt lgkmcnt(0)
    s_add_u32 s42, s42, 0x01010101
    s_mul_i32 s44, s4, 10240
    s_add_u32 s44, s44, {QG_BASE}
    s_cmp_ge_u32 s3, s9
    s_cbranch_scc1 L_p_done
    s_lshl_b32 s47, s46, 24
    s_xor_b32 s47, s47, s42
    s_lshl3_add_u32 s8, s3, s5
    s_lshl_b32 s8, s8, 8
    s_add_u32 s8, s8, s44
    v_add_u32 v6, s8, v7
    s_mov_b32 s10, 0x01000100
    s_mov_b32 s11, 0x03020302
    s_waitcnt vmcnt(10)""")
    for oc in range(10):
        A(f"v_perm_b32 v21, v{16+oc//2}, v{16+oc//2}, s{10+(oc&1)}")
        for d in range(4): A(f"v_and_b32 v{A0+4*oc+d}, v21, v{8+d}")
    for oc in range(10):
        if oc==0: A("s_waitcnt vmcnt(4)")
        if oc==6: A("s_cmp_eq_u32 s14, 2\ns_cbranch_scc1 L_p_go\ns_waitcnt vmcnt(0)\nL_p_go:")
        A(f"v_mfma_f32_16x16x32_bf16 v[12:15], v[{A0+4*oc}:{A0+4*oc+3}], v[{W0+4*oc}:{W0+4*oc+3}], {'0' if oc==0 else 'v[12:15]'}")
    stamp(2)
    fold(12,16,"s47")
    A("global_store_dwordx4 v6, v[12:15], s[40:41]\ns_mov_b64 exec, -1")
    stamp(3)
    A("L_p_done:")
    A("v_mov_b32 v21, 0\ns_cmp_eq_u32 s14, 0\ns_cbranch_scc1 L_p_exit")
    A(f"""s_mul_i32 s15, s4, 3
    s_add_u32 s15, s15, s12
    s_mul_i32 s8, s15, {64*1280}
    s_add_u32 s8, s8, 3840
    v_add_u32 v4, s8, v22
    s_mul_i32 s8, s15, 3072
    s_add_u32 s8, s8, {O_BASE}
    v_lshl_add_u32 v5, v0, 4, s8
    s_lshl_b32 s8, s15, 8
    s_lshl_b32 s10, s13, 15
    s_add_u32 s8, s8, s10
    s_add_u32 s8, s8, {F_BASE}
    v_add_u32 v6, s8, v7
    s_lshr_b32 s51, s42, 8
    s_lshr_b32 s52, s42, 16
    s_lshr_b32 s53, s42, 24
    v_mov_b32 v16, 0
    v_mov_b32 v17, 0
    v_mov_b32 v18, 0
    v_mov_b32 v19, 0
    s_lshl_b32 s8, s12, 7
    s_add_u32 s8, s8, s44
    s_add_u32 s8, s8, {3*2048}
    v_lshl_add_u32 v20, v1, 8, v3
    v_add_u32 v20, s8, v20
    s_lshl_b32 s8, s3, 8
    v_and_b32 v64, 15, v0
    v_lshl_add_u32 v64, v64, 4, s8
    v_lshrrev_b32 v65, 4, v0
    v_lshl_add_u32 v64, v65, 2, v64
    v_lshl_add_u32 v65, v1, 4, s8""")
    stamp(4)
    A("s_barrier")
    stamp(5)
    GA=24; T=40
    def guissue(r, fl=" sc1"):
        A(f"global_load_dwordx4 v[{r}:{r+3}], v20, s[40:41]{fl}\nglobal_load_dwordx4 v[{r+4}:{r+7}], v20, s[40:41] offset:2048{fl}")
    A(f"ds_read_b64 v[22:23], v21 offset:{L_GATE}")
    A("s_cmp_lg_u32 s14, 2")
    for k in range(8):
        if k==gupos:
            A("s_cbranch_scc1 L_nogu"); guissue(GA); A("L_nogu:")
        if k==7: A("v_add_u32 v4, 5120, v4")
        else: A("s_nop 0")
        A(f"global_load_dwordx4 v[{WO+4*k}:{WO+4*k+3}], v4, s[24:25] offset:{(1280*k-3840) if k<7 else 0}{NT}")
    stamp(6)
    A("s_cbranch_scc1 L_o_wait")
    poll2("gu",GA,None,T+4,8-gupos,0,guissue)
    stamp(7)
    red8regs(GA,T)
    C1=f2u(-2*math.sqrt(2/math.pi)*math.log2(math.e)); C3=f2u(0.044715)
    g=T; t=T+1
    bf16r(g)
    A(f"""v_mul_f32 v{t}, v{g}, v{g}
    v_mul_f32 v{t}, {hex(C3)}, v{t}
    v_fma_f32 v{t}, v{t}, v{g}, v{g}
    v_mul_f32 v{t}, {hex(C1)}, v{t}
    v_exp_f32 v{t}, v{t}
    v_add_f32 v{t}, 1.0, v{t}
    v_rcp_f32 v{t}, v{t}
    v_mul_f32 v{t}, v{g}, v{t}""")
    bf16r(t)
    A(f"""v_mul_f32_dpp v{t}, v{g}, v{t} row_ror:8{DPP}
    v_cvt_pk_bf16_f32 v{t}, v{t}, v{t}
    ds_write_b32 v64, v{t} offset:{L_HD}
    ds_read_b128 v[44:47], v65 offset:{L_HD}
    s_waitcnt lgkmcnt(0)""")
    for k in range(4):
        for d in range(4): A(f"v_and_b32 v{48+4*k+d}, v{44+k}, v{8+d}")
    for k in range(4): A(f"v_mfma_f32_16x16x32_bf16 v[16:19], v[{48+4*k}:{51+4*k}], v[{WD+4*k}:{WD+4*k+3}], {'0' if k==0 else 'v[16:19]'}")
    A("s_waitcnt lgkmcnt(0)")
    for k in range(4): A(f"v_mul_f32 v{16+k}, v{16+k}, v23")
    A("L_o_wait:")
    A("s_waitcnt lgkmcnt(0)")
    stamp(10)
    A("s_barrier")
    stamp(8)
    M=36; CK=37; R=40; W=120
    sets=[24,132][:osets]
    def oiss(r):
        A(f"""global_load_dwordx4 v[{r+8}:{r+11}], v5, s[40:41] offset:2048 sc1
        global_load_dwordx4 v[{r}:{r+3}], v5, s[40:41] sc1
        global_load_dwordx4 v[{r+4}:{r+7}], v5, s[40:41] offset:1024 sc1""")
    tg=["s42","s51","s52","s53"]
    def chk(r,k,first=False):
        if first: A(f"v_xor_b32 v{CK}, {tg[k]}, v{r+k}")
        else: A(f"v_bitop3_b32 v{CK}, v{CK}, v{r+k}, {tg[k]} bitop3:0xf6")
    def ocheck(OA, base):
        ML=OA+8
        A(f"s_waitcnt vmcnt({base+2})")
        A(f"v_max_f32_dpp v{M}, v{ML}, v{ML} {X1}{DPP}")
        chk(ML,0,True); chk(ML,1)
        A(f"v_max_f32_dpp v{M}, v{M}, v{M} {X2}{DPP}")
        chk(ML,2); chk(ML,3)
        A(f"v_max_f32_dpp v{M}, v{M}, v{M} {HM}{DPP}")
        A(f"v_sub_f32 v{M}, v{ML}, v{M}\nv_exp_f32 v{M}, v{M}")
        A(f"s_waitcnt vmcnt({base})")
        for r in (OA,OA+4):
            for k in range(4): chk(r,k)
        A(f"v_cmp_ne_u32_sdwa vcc, v{CK}, v21 src0_sel:BYTE_0 src1_sel:BYTE_0")
    def omul(OA):
        for k in range(8): A(f"v_mul_f32 v{W+k}, v{OA+k}, v{M}")
        A(f"v_mul_f32 v{W+8}, v{OA+9}, v{M}")
    if osets==1:
        if stamps:
            oiss(sets[0]); A("s_waitcnt vmcnt(3)"); stamp(13); A("s_waitcnt vmcnt(0)"); stamp(12); A("s_branch L_o_in")
        else:
            oiss(sets[0]); A("s_branch L_o_in")
        A("L_o_loop:")
        if olsleep: A(f"s_sleep {olsleep}")
        oiss(sets[0])
        A("L_o_in:")
        A(f"s_add_u32 s43, s43, 0x100\ns_cmp_ge_u32 s43, {spin*256}")
        ocheck(sets[0],0)
        A("s_cbranch_scc1 L_o_ok\ns_cbranch_vccnz L_o_loop\nL_o_ok:")
        stamp(11)
        omul(sets[0])
    else:
        oiss(sets[1])
        if stamps: A("s_waitcnt vmcnt(3)"); stamp(13); stamp(12)
        else: A("s_waitcnt vmcnt(3)")
        A("L_o_loop:")
        if olsleep: A(f"s_sleep {olsleep}")
        oiss(sets[0])
        ocheck(sets[1],3)
        A("s_cbranch_vccnz L_o_b")
        stamp(11)
        omul(sets[1])
        A("s_branch L_o_ok2")
        A("L_o_b:")
        if olsleep: A(f"s_sleep {olsleep}")
        oiss(sets[1])
        A(f"s_add_u32 s43, s43, 0x100\ns_cmp_ge_u32 s43, {spin*256}")
        ocheck(sets[0],3)
        A("s_cbranch_scc1 L_o_ok\ns_cbranch_vccnz L_o_loop\nL_o_ok:")
        stamp(11)
        omul(sets[0])
        A("L_o_ok2:")
    for k in range(4): A(f"v_add_f32_dpp v{R+k}, v{W+k}, v{W+k} {HM} row_mask:0xf bank_mask:0x5")
    for k in range(4): A(f"v_add_f32_dpp v{R+k}, v{W+4+k}, v{W+4+k} {HM} row_mask:0xf bank_mask:0xa")
    for m in (X1,X2):
        for k in range(4): A(f"v_add_f32_dpp v{R+k}, v{R+k}, v{R+k} {m}{DPP}")
    for k in range(4): A(f"v_cvt_pk_bf16_f32 v{R+k}, v{R+k}, v{R+k}")
    LL=W+8
    extra=[f"v_add_f32_dpp v{LL}, v{LL}, v{LL} {m}{DPP}" for m in (X1,X2,HM)]+[f"v_rcp_f32 v{LL}, v{LL}", f"v_mul_f32 v22, v22, v{LL}"]
    AB=48
    for k in range(9):
        if k<8: abuild(AB+4*(k%3), R+(k&3), k<4)
        if k>=1:
            j=k-1
            if k==8: A(extra.pop(0))
            A(f"v_mfma_f32_16x16x32_bf16 v[12:15], v[{AB+4*(j%3)}:{AB+4*(j%3)+3}], v[{WO+4*j}:{WO+4*j+3}], {'0' if j==0 else 'v[12:15]'}")
    for e in extra: A(e)
    for k in range(4): A(f"v_fma_f32 v{12+k}, v{12+k}, v22, v{16+k}")
    fold(12,16)
    A("global_store_dwordx4 v6, v[12:15], s[40:41] sc1")
    stamp(9)
    if stamps: A("s_branch L_x3")
    A("s_endpgm")
    A("L_p_exit:")
    A("s_cmp_lg_u32 s3, 4\ns_cbranch_scc1 L_x1")
    G0=30
    A(f"s_cmp_lt_u32 s4, 24\ns_cbranch_scc1 L_g3\ns_waitcnt vmcnt(0)\nL_g3:\nv_mov_b32 v{G0}, 0\ns_mov_b32 s8, 0xffff0000")
    for k in range(5):
        a,b,c,d=G0+2,G0+3,G0+4,G0+5
        A(f"""v_lshlrev_b32 v{a}, 16, v{GX+k}
        v_and_b32 v{b}, s8, v{GX+k}
        v_lshlrev_b32 v{c}, 16, v{GX+6+k}
        v_and_b32 v{d}, s8, v{GX+6+k}
        v_pk_mul_f32 v[{a}:{b}], v[{a}:{b}], v[{c}:{d}]
        v_cvt_pk_bf16_f32 v{a}, v{a}, v{b}
        v_lshlrev_b32 v{b}, 16, v{a}
        v_and_b32 v{a}, s8, v{a}
        v_add_f32 v{G0}, v{G0}, v{b}
        v_add_f32 v{G0}, v{G0}, v{a}""")
    allred8("v_add_f32",[G0]); allred_oct("v_add_f32",G0,G0+1)
    bf16r(G0)
    A(f"""v_mul_f32 v{G0}, {hex(f2u(-math.log2(math.e)))}, v{G0}
    v_exp_f32 v{G0}, v{G0}
    v_add_f32 v{G0}, 1.0, v{G0}
    v_rcp_f32 v{G0}, v{G0}""")
    bf16r(G0)
    A(f"v_sub_f32 v{G0+1}, 1.0, v{G0}")
    bf16r(G0+1)
    A(f"ds_write_b64 v21, v[{G0}:{G0+1}] offset:{L_GATE}\ns_waitcnt lgkmcnt(0)\ns_barrier\ns_branch L_pubdone")
    A("L_x1:\ns_barrier")
    if stamps: A("s_branch L_x2")
    A("s_endpgm")
    A(";NEWBLOCK")
    A("L_kv2:")
    stamp(4)
    poll2("q",PA,PB if pb<17 else None,S+4,after('PA1'),after('PB1') if pb<17 else 0,qissue)
    stamp(5)
    red8regs(PA,S)
    A(f"""v_cvt_pk_bf16_f32 v{S}, v{S}, v{S}
    ds_write_b16 v177, v{S} offset:{L_QB}
    ds_read_b128 v[12:15], v178 offset:{L_QB}
    s_waitcnt lgkmcnt(0)""")
    for oc in range(16): A(f"v_dot2_f32_bf16 v{S+oc}, v{K0+4*oc}, v12, 0")
    for d in range(1,4):
        for oc in range(16): A(f"v_dot2c_f32_bf16 v{S+oc}, v{K0+4*oc+d}, v{12+d}")
    T=PA
    for k in range(8): A(f"v_add_f32_dpp v{T+k}, v{S+k}, v{S+k} {HM} row_mask:0xf bank_mask:0x5")
    for k in range(8): A(f"v_add_f32_dpp v{T+k}, v{S+8+k}, v{S+8+k} {HM} row_mask:0xf bank_mask:0xa")
    for m in (X1,X2):
        for k in range(8): A(f"v_add_f32_dpp v{T+k}, v{T+k}, v{T+k} {m}{DPP}")
    A(f"""s_mov_b32 exec_lo, 0x11111111
    s_mov_b32 exec_hi, 0x11111111
    ds_write_b128 v179, v[{T}:{T+3}]
    ds_write_b128 v179, v[{T+4}:{T+7}] offset:16
    s_mov_b64 exec, 1
    ds_add_u32 v183, v184 offset:{L_CNT}
    s_mov_b64 exec, -1""")
    stamp(6)
    A("L_sc:")
    A(f"""ds_read_b32 v16, v183 offset:{L_CNT}
    ds_read_b64 v[18:19], v180
    ds_read_b64 v[20:21], v180 offset:512
    ds_read_b64 v[22:23], v180 offset:1024
    s_waitcnt lgkmcnt(3)
    v_readfirstlane_b32 s8, v16
    s_cmp_lt_u32 s8, 3
    s_waitcnt lgkmcnt(0)
    s_cbranch_scc1 L_sc""")
    stamp(7)
    A(f"""v_add_f32 v18, v18, v20
    v_add_f32 v19, v19, v21
    v_add_f32 v18, v18, v22
    v_add_f32 v19, v19, v23
    v_cvt_pk_bf16_f32 v18, v18, v19
    v_and_b32 v19, 0xffff0000, v18
    v_lshlrev_b32 v18, 16, v18
    v_mul_f32 v18, {hex(SCALE)}, v18
    v_mul_f32 v19, {hex(SCALE)}, v19
    v_cvt_pk_bf16_f32 v18, v18, v19
    v_and_b32 v19, 0xffff0000, v18
    v_lshlrev_b32 v18, 16, v18
    v_mul_f32 v18, {hex(LOG2E)}, v18
    v_mul_f32 v19, {hex(LOG2E)}, v19
    v_max_f32 v188, v18, v19""")
    allred8("v_max_f32",[188]); allred_oct("v_max_f32",188,20)
    embed(188,ks=[0])
    A(f"""v_sub_f32 v18, v18, v188
    v_sub_f32 v19, v19, v188
    v_exp_f32 v18, v18
    v_exp_f32 v19, v19
    v_cvt_pk_bf16_f32 v20, v18, v18
    v_cvt_pk_bf16_f32 v21, v19, v19
    ds_write_b64 v181, v[20:21] offset:{L_PD}""")
    for j in range(4): A(f"ds_read_b128 v[{S+4*j}:{S+4*j+3}], v182 offset:{L_PD+16*j}")
    A("v_add_f32 v189, v18, v19")
    allred8("v_add_f32",[189]); allred_oct("v_add_f32",189,20)
    embed(188,ks=[1,2,3])
    A("s_waitcnt lgkmcnt(0)")
    stamp(8)
    for oc in range(17):
        if oc<16:
            for d in range(4): A(f"v_and_b32 v{K0+4*oc+d}, v{S+oc}, v{8+d}")
        if 1<=oc<=8:
            k=oc-1; n=after('V%d'%k)
            if n<after('PA1'): A(f"s_waitcnt vmcnt({n})")
            A(f"v_mfma_f32_16x16x32_bf16 v[12:15], v[{K0+4*k}:{K0+4*k+3}], v[{V0+4*k}:{V0+4*k+3}], {'0' if k==0 else 'v[12:15]'}")
    for k in range(8,16):
        n=after('V%d'%k)
        if n<after('PA1'): A(f"s_waitcnt vmcnt({n})")
        A(f"v_mfma_f32_16x16x32_bf16 v[12:15], v[{K0+4*k}:{K0+4*k+3}], v[{V0+4*k}:{V0+4*k+3}], v[12:15]")
    stamp(9)
    A("s_mov_b64 exec, 0xff")
    if fast:
        A("s_cmp_lg_u64 s[48:49], 0\ns_cbranch_scc1 L_slowpub")
        A("global_store_dwordx4 v6, v[188:191], s[40:41] offset:2048\ns_mov_b64 exec, -1")
        fold(12,PA)
        A("global_store_dwordx4 v6, v[12:15], s[40:41]")
    else:
        A("global_store_dwordx4 v6, v[188:191], s[40:41] offset:2048 sc1\ns_mov_b64 exec, -1")
        fold(12,PA)
        A("global_store_dwordx4 v6, v[12:15], s[40:41] sc1")
    A("L_pubdone:")
    stamp(10)
    A("s_barrier")
    if stamps: A("s_waitcnt vmcnt(0)"); stamp(15)
    A(f"""s_cmp_lt_u32 s4, 24
    s_cbranch_scc1 L_x3
    s_lshr_b32 s10, s5, 1
    s_lshl3_add_u32 s8, s10, s4
    s_sub_u32 s8, s8, 24
    s_cmp_ge_u32 s8, 10
    s_cbranch_scc1 L_x3
    s_mov_b64 exec, -1
    s_and_b32 s11, s5, 1
    s_sub_u32 s12, s3, 4
    s_lshl_b32 s10, s8, 15
    s_mul_i32 s13, s12, 6144
    s_add_u32 s10, s10, s13
    s_lshl_b32 s13, s11, 7
    s_add_u32 s10, s10, s13
    s_add_u32 s10, s10, {F_BASE+2048}
    v_lshl_add_u32 v19, v1, 8, v3
    v_add_u32 v19, s10, v19
    s_lshl_b32 s15, s8, 7
    s_lshl3_add_u32 s15, s11, s15
    v_bfe_u32 v20, v0, 4, 1
    v_and_b32 v21, 1, v1
    v_lshl_add_u32 v20, v21, 1, v20
    v_lshl_add_u32 v21, v2, 2, v20
    v_lshlrev_b32 v21, 4, v21
    s_lshl_b32 s12, s12, 2
    v_add_u32 v22, s12, v21
    v_lshl_add_u32 v20, v20, 1, v3
    v_add_u32 v20, s15, v20
    v_mov_b32 v16, 0
    v_mov_b32 v17, 1
    v_mov_b32 v24, 0
    v_mov_b32 v25, 0
    v_mov_b32 v26, 0
    v_mov_b32 v27, 0
    s_mov_b64 s[6:7], -1
    s_mov_b64 s[8:9], -1
    s_mov_b64 s[10:11], -1
    s_barrier""")
    stamp(11)
    MK=["s[6:7]","s[8:9]","s[10:11]"]
    if outpre: A("global_load_ushort v30, v20, s[36:37] sc1")
    def fiss(d):
        for i in range(3):
            r=32+4*(3*d+i)
            A(f"s_or_b64 exec, {MK[i]}, 1\nglobal_load_dwordx4 v[{r}:{r+3}], v19, s[40:41] offset:{2048*(i-1)} sc1")
    A(";NOPAD{")
    for d in range(fdepth-1):
        fiss(d)
        A("s_sleep 2")
    A("L_f_loop:")
    for d in range(fdepth):
        fiss((d+fdepth-1)%fdepth)
        A(f"s_add_u32 s43, s43, 0x10000\ns_waitcnt vmcnt({3*(fdepth-1)})")
        for i in range(3):
            r=32+4*(3*d+i)
            A(f"s_mov_b64 exec, {MK[i]}\ns_cbranch_execz L_h{d}_{i}")
            cmpx(r)
            A(f"v_pk_add_f32 v[24:25], v[24:25], v[{r}:{r+1}]\nv_pk_add_f32 v[26:27], v[26:27], v[{r+2}:{r+3}]")
            A(f"s_andn2_b64 {MK[i]}, {MK[i]}, exec\nL_h{d}_{i}:")
        A(f"s_or_b64 s[54:55], {MK[0]}, {MK[1]}\ns_or_b64 s[54:55], s[54:55], {MK[2]}\ns_cbranch_scc0 L_f_ok")
        if fgap: A(f"s_sleep {fgap}")
    A(f"""s_cmp_lt_u32 s43, 0xf0000000
    s_cbranch_scc1 L_f_loop
    L_f_ok:
    s_mov_b64 exec, -1""")
    A(";NOPAD}")
    stamp(13)
    for k in range(2): A(f"v_add_f32_dpp v{28+k}, v{24+k}, v{24+k} row_ror:8 row_mask:0xf bank_mask:0x3")
    for k in range(2): A(f"v_add_f32_dpp v{28+k}, v{26+k}, v{26+k} row_ror:8 row_mask:0xf bank_mask:0xc")
    A(f"""v_permlane16_swap_b32 v28, v29
    v_add_f32 v28, v28, v29
    v_mov_b32 v29, v28
    v_permlane32_swap_b32 v28, v29
    v_add_f32 v28, v28, v29
    ds_write_b32 v22, v28
    s_mov_b64 exec, 1
    ds_add_rtn_u32 v18, v16, v17 offset:{L_CNT+4}
    s_mov_b64 exec, -1
    ds_read_b128 v[24:27], v21
    s_mov_b32 exec_hi, 0
    s_waitcnt lgkmcnt(0)
    v_readfirstlane_b32 s8, v18
    v_add_f32 v24, v24, v25
    v_add_f32 v26, v26, v27
    s_cmp_lg_u32 s8, 3
    s_cbranch_scc1 L_fin
    v_add_f32 v24, v24, v26
    v_cvt_pk_bf16_f32 v24, v24, v24
    global_store_short v20, v24, s[36:37]
    s_cmp_lg_u32 s15, 0
    s_cbranch_scc1 L_fin
    s_mov_b64 exec, 1
    v_mov_b32 v26, s42
    global_store_dword v20, v26, s[40:41]""")
    if stamps: A("s_branch L_fin\nL_x2:\ns_barrier\nL_x3:\ns_barrier")
    else: A("L_x3:")
    A("L_fin:")
    stamp(14)
    if stamps:
        A("s_mov_b64 exec, -1")
        A("s_waitcnt lgkmcnt(0)")
        if probe is not None:
            lo,hi,st,sign,wgsel=probe
            A("v_mov_b32 v251, 0\ns_or_b32 s98, s2, s3\ns_cbranch_scc1 L_dbgd\nv_mov_b32 v250, s60\nglobal_store_dword v251, v250, s[38:39] sc1\nL_dbgd:")
            A(f"s_cmp_lt_u32 s3, {lo}\ns_cbranch_scc1 L_end\ns_cmp_gt_u32 s3, {hi}\ns_cbranch_scc1 L_end")
            if wgsel is not None: A(f"s_cmp_lg_u32 s2, {wgsel}\ns_cbranch_scc1 L_end")
            A(f"L_dbgw:\ns_sleep 32\ns_memrealtime s[96:97]\ns_waitcnt lgkmcnt(0)\ns_sub_u32 s96, s96, s60\ns_cmp_lt_u32 s96, 3500\ns_cbranch_scc1 L_dbgw")
            A("global_load_dword v250, v251, s[38:39] sc1\ns_waitcnt vmcnt(0)\nv_readfirstlane_b32 s95, v250")
            A(f"s_sub_u32 s94, s{60+2*st}, s95\ns_mul_i32 s94, s94, {10*sign}\ns_add_u32 s94, s94, {6000 if sign>=0 else 30000}")
            A(f"s_min_u32 s94, s94, 50000")
            A(f"L_dbgx:\ns_sleep 2\ns_memrealtime s[96:97]\ns_waitcnt lgkmcnt(0)\ns_sub_u32 s96, s96, s95\ns_cmp_lt_u32 s96, s94\ns_cbranch_scc1 L_dbgx")
        else:
            A("L_dbgw:\ns_sleep 32\ns_memrealtime s[96:97]\ns_waitcnt lgkmcnt(0)\ns_sub_u32 s96, s96, s60\ns_cmp_lt_u32 s96, 1500\ns_cbranch_scc1 L_dbgw")
            for i in range(16): A(f"v_writelane_b32 v250, s{60+2*i}, {i}")
            A("v_writelane_b32 v250, s46, 16")
            A("v_writelane_b32 v250, s43, 17")
            A("s_getreg_b32 s98, hwreg(HW_REG_HW_ID)")
            A("v_writelane_b32 v250, s98, 18")
            A("s_lshl_b32 s98, s2, 3\ns_add_u32 s98, s98, s3\ns_lshl_b32 s98, s98, 8")
            A(f"s_add_u32 s98, s98, {STAMP_BASE}")
            A("v_lshl_add_u32 v251, v0, 2, s98")
            A("global_store_dword v251, v250, s[40:41]")
    A("L_end:")
    A("s_endpgm")
    if fast:
        A("L_slowpub:")
        A("global_store_dwordx4 v6, v[188:191], s[40:41] offset:2048 sc1\ns_mov_b64 exec, -1\ns_nop 4")
        fold(12,PA)
        A("global_store_dwordx4 v6, v[12:15], s[40:41] sc1\ns_branch L_pubdone")
    L=A.L
    def drop(pred, repl=None):
        for i,l in enumerate(L):
            if pred(l): L[i]= repl if repl else "    s_nop 0"
    if 'p' in skip: drop(lambda l: "global_store_dwordx4 v6, v[12:15], s[40:41]" in l and L.index(l)<L.index("L_p_done:") and False)
    if 'p' in skip:
        i=[k for k,l in enumerate(L) if l.strip()=="global_store_dwordx4 v6, v[12:15], s[40:41]"][0]; L[i]="    s_nop 0"
    if 'q' in skip or 'p' in skip:
        for nm in ("q","gu"): drop(lambda l: l.strip()==f"s_cbranch_scc1 L_{nm}_ok", f"    s_branch L_{nm}_loc")
        drop(lambda l: "s_cbranch_scc1 L_slowpub" in l)
    if 'g' in skip:
        drop(lambda l: l.strip()=="s_cbranch_scc1 L_nogu", "    s_branch L_nogu"); drop(lambda l: l.strip()=="s_cbranch_scc1 L_o_wait", "    s_branch L_o_wait")
    if 'o' in skip:
        drop(lambda l: "s_cbranch_vccnz" in l)
        idx=[k for k,l in enumerate(L) if l.strip() in ("global_store_dwordx4 v6, v[12:15], s[40:41]","global_store_dwordx4 v6, v[188:191], s[40:41] offset:2048") and k>L.index("L_kv2:")]
        for k in idx: L[k]="    s_nop 0"
    if 'f' in skip:
        drop(lambda l: l.strip()=="global_store_dwordx4 v6, v[12:15], s[40:41] sc1")
    if 'f' in skip or 'r' in skip:
        i=L.index("L_f_loop:"); L[i+1]="    s_branch L_f_ok"
    body,n=pad(A.L)
    if warm:
        body,pads=place_pads(body, entry_off=0, verbose=verbose, target=lambda k,N: "L_back" if k<3 else "L_back2")
        assert len(pads)<=8
        i=body.index("L_back2:")
        for k in range(len(pads),8): body.insert(i, f"L_t{k}:")
    nv = 256 if stamps else 200
    hdr=open(f"cdna_kernels/{NAME}.s.ref").read().split("; Override launch")[0] if header else ""
    txt=hdr+f"""; @launch grid=(256,1,1) block=(512,1,1) lds={LDS}
.amdgcn_target "amdgcn-amd-amdhsa--gfx950"
.text
.globl {kname}
.p2align 12
.fill 832, 4, 0xbf800000
.p2align 8
.type {kname},@function
"""+"\n".join(body)+f"""
.section .rodata,"a"
.p2align 6
.amdhsa_kernel {kname}
  .amdhsa_next_free_vgpr {nv}
  .amdhsa_next_free_sgpr 102
  .amdhsa_accum_offset {nv}
  .amdhsa_group_segment_fixed_size 0
  .amdhsa_kernarg_size 104
  .amdhsa_user_sgpr_count 2
  .amdhsa_user_sgpr_kernarg_segment_ptr 1
  .amdhsa_system_sgpr_workgroup_id_x 1
  .amdhsa_float_denorm_mode_32 3
.end_amdhsa_kernel
"""
    open(path,"w").write(txt)
    return n
if __name__=="__main__":
    from build import build
    p=f"h8.s"
    print("nops:",gen(p, verbose=True))
    print(build(p, NAME+"_kernel"))
```

```python
import sys, struct, math
sys.path.insert(0,"gen"); sys.path.insert(0,"exp")
from asmlib import Asm, pad, place_pads
NAME="gated_mix__sliding_block_cached__glu_gated_geglu__decode"
def f2u(x): return struct.unpack("<I", struct.pack("<f", x))[0]
LOG2E=f2u(math.log2(math.e)); SCALE=f2u(192**-0.5)
QG_BASE=0x1000; O_BASE=0x52000; F_BASE=0xA0000; STAMP_BASE=0x100000
DPP=" row_mask:0xf bank_mask:0xf"
X1="quad_perm:[1,0,3,2]"; X2="quad_perm:[2,3,0,1]"; HM="row_half_mirror"
L_SC=0; L_GATE=1536; L_CNT=1544; L_QB=1600; L_PD=2048; L_HD=3584
LDS=3584+1024

def gen(path, kname=NAME+"_kernel", nt=True, stamps=False, pa=2, pb=5, cap=8, nv0=8, n1=2, wdearly=False, gdelay=True, spin=1<<16, warm=True, header=True,
        olsleep=0, fback=3, fthr=24, gupos=0, probe=None, fast=True, pretouch=True, verbose=False, outpre=True, osets=2, skip='', fdepth=2, fgap=0):
    A=Asm()
    NT=" nt" if nt else ""
    def stamp(i):
        if stamps: A(f"s_memrealtime s[{60+2*i}:{61+2*i}]")
    masks="""v_mov_b32 v12, 0xffff
        v_mov_b32 v13, 0
        v_lshlrev_b64 v[12:13], v3, v[12:13]
        v_cmp_gt_u32 vcc, 4, v2
        s_nop 1
        v_cndmask_b32 v8, 0, v12, vcc
        v_cndmask_b32 v9, 0, v13, vcc
        v_cndmask_b32 v10, v12, 0, vcc
        v_cndmask_b32 v11, v13, 0, vcc"""
    def embed(r, tag="s42", ks=range(4)):
        for k in ks: A(f"v_mov_b32_sdwa v{r+k}, {tag} dst_sel:BYTE_0 dst_unused:UNUSED_PRESERVE src0_sel:BYTE_{k}")
    def fold(acc,tmp,tag="s42"):
        for k in range(4): A(f"v_permlane32_swap_b32 v{acc+k}, v{tmp+k}")
        for k in range(4): A(f"v_add_f32_dpp v{acc+k}, v{tmp+k}, v{acc+k} row_ror:8{DPP}")
        embed(acc,tag)
        A("s_mov_b64 exec, 0x00ff00ff")
    def cmpx(r,n=4):
        for k in range(n): A(f"v_cmpx_eq_u32_sdwa vcc, v{r+k}, s42 src0_sel:BYTE_0 src1_sel:BYTE_{k}")
    def checkq(r, t):
        A(f"v_xor_b32_sdwa v{t}, v{r+3}, s42 dst_sel:DWORD dst_unused:UNUSED_PAD src0_sel:BYTE_0 src1_sel:BYTE_3")
        A(f"v_xor_b32_sdwa v{t+1}, v{r+7}, s42 dst_sel:DWORD dst_unused:UNUSED_PAD src0_sel:BYTE_0 src1_sel:BYTE_3")
        A(";NOPAD{")
        cmpx(r,3); cmpx(r+4,3)
        A(f"v_cmpx_gt_u32 vcc, 8, v{t}\nv_cmpx_gt_u32 vcc, 8, v{t+1}")
        A("s_cmp_eq_u64 exec, -1\ns_mov_b64 exec, -1\n;NOPAD}")
    def poll2(name, PA, PB, t, wa, wb, reissue):
        A(f"s_waitcnt vmcnt({wa})")
        if PB is not None:
            checkq(PA,t)
            A(f"s_cbranch_scc1 L_{name}_ok")
            A(f"s_add_u32 s43, s43, 1\ns_waitcnt vmcnt({wb})")
            for k in range(4): A(f"v_mov_b64 v[{PA+2*k}:{PA+2*k+1}], v[{PB+2*k}:{PB+2*k+1}]")
        A(f"L_{name}_chk:")
        checkq(PA,t)
        A(f"s_cbranch_scc1 L_{name}_ok")
        reissue(PA)
        A(f"s_cmp_lg_u32 s43, 3\ns_cbranch_scc1 L_{name}_nowb\nbuffer_wbl2 sc1\nL_{name}_nowb:")
        A(f"s_add_u32 s43, s43, 1\ns_cmp_lt_u32 s43, {spin}\ns_waitcnt vmcnt(0)\ns_cbranch_scc1 L_{name}_chk")
        A(f"L_{name}_ok:")
        A(f"v_cmp_ne_u32 s[48:49], s46, v{t}")
        A(f"s_cmp_eq_u64 s[48:49], 0\ns_cbranch_scc1 L_{name}_loc\nbuffer_wbl2 sc1\nL_{name}_loc:")
    def bf16r(r):
        A(f"v_cvt_pk_bf16_f32 v{r}, v{r}, v{r}\nv_and_b32 v{r}, 0xffff0000, v{r}")
    def allred_oct(op, r, t):
        A(f"{op}_dpp v{r}, v{r}, v{r} row_ror:8{DPP}")
        A(f"v_mov_b32 v{t}, v{r}\nv_permlane16_swap_b32 v{r}, v{t}\n{op} v{r}, v{r}, v{t}")
        A(f"v_mov_b32 v{t}, v{r}\nv_permlane32_swap_b32 v{r}, v{t}\n{op} v{r}, v{r}, v{t}")
    def allred8(op, rs):
        for m in (X1,X2,HM):
            for r in rs: A(f"{op}_dpp v{r}, v{r}, v{r} {m}{DPP}")
    def red8regs(a, b):
        for k in range(4): A(f"v_add_f32_dpp v{b+k}, v{a+k}, v{a+k} row_ror:8 row_mask:0xf bank_mask:0x3")
        for k in range(4): A(f"v_add_f32_dpp v{b+k}, v{a+4+k}, v{a+4+k} row_ror:8 row_mask:0xf bank_mask:0xc")
        A(f"v_permlane16_swap_b32 v{b}, v{b+1}\nv_permlane16_swap_b32 v{b+2}, v{b+3}")
        A(f"v_add_f32 v{b}, v{b}, v{b+1}\nv_add_f32 v{b+2}, v{b+2}, v{b+3}")
        A(f"v_permlane32_swap_b32 v{b}, v{b+2}\nv_add_f32 v{b}, v{b}, v{b+2}")
    def abuild(dst, src, low):
        for d in range(4):
            own = (d<2)==low
            if own: A(f"v_and_b32 v{dst+d}, v{src}, v{8+d}")
            else: A(f"v_and_b32_dpp v{dst+d}, v{src}, v{8+d} {HM}{DPP}")

    A(f"{kname}:")
    stamp(0)
    A("""s_cmp_ge_u32 s2, 256
    s_cbranch_scc1 L_end
    s_load_dwordx16 s[16:31], s[0:1], 0
    s_load_dwordx8 s[32:39], s[0:1], 64
    s_load_dwordx2 s[40:41], s[0:1], 96
    v_lshrrev_b32 v1, 6, v0
    v_and_b32 v0, 63, v0
    v_readfirstlane_b32 s3, v1
    s_and_b32 s4, s2, 7
    s_lshr_b32 s5, s2, 6
    s_lshl3_add_u32 s4, s5, s4
    s_bfe_u32 s5, s2, 0x30003
    v_lshrrev_b32 v1, 3, v0
    v_and_b32 v2, 7, v0
    v_lshlrev_b32 v3, 4, v2
    s_mov_b32 s43, 0
    s_getreg_b32 s46, hwreg(HW_REG_XCC_ID, 0, 3)
    s_cmp_ge_u32 s3, 5
    s_cbranch_scc1 L_kv""")
    W0=24; A0=120; WO=72; WD=104; GX=72
    A(f"""s_setprio 1
    s_mul_i32 s7, s4, 3
    s_add_u32 s7, s7, s3
    s_movk_i32 s6, 0x3000
    s_cmp_lt_u32 s3, 3
    s_cselect_b32 s7, s7, s4
    s_cselect_b32 s6, s6, 0xc00
    s_mul_i32 s8, s5, 80
    v_mad_u32_u24 v5, v1, 10, s8
    v_mul_u32_u24 v4, s6, v5
    s_lshl_b32 s7, s7, 7
    v_add3_u32 v4, v4, v3, s7
    v_lshlrev_b32 v5, 1, v5
    s_cmp_ge_u32 s4, 24
    s_cselect_b32 s9, 3, 5
    s_lshl2_add_u32 s12, s5, s3
    s_cmp_eq_u32 s5, 7
    s_subb_u32 s12, s12, 0
    s_mul_i32 s13, s12, 43
    s_lshr_b32 s13, s13, 7
    s_mul_i32 s8, s13, 3
    s_sub_u32 s12, s12, s8
    s_movk_i32 s8, 10240
    v_mad_u32_u24 v22, v1, s8, v3
    s_lshl_b32 s10, s13, 7
    v_add_u32 v22, s10, v22
    s_cmp_lt_u32 s12, 2
    s_cselect_b32 s14, 2, 1
    s_cmp_ge_u32 s4, 24
    s_cselect_b32 s14, 1, s14
    s_cmp_lt_u32 s5, 6
    s_cselect_b32 s8, 4, 3
    s_cmp_ge_u32 s3, s8
    s_cselect_b32 s14, 0, s14
    v_mul_u32_u24 v7, 20, v0
    s_waitcnt lgkmcnt(0)
    s_cmp_lt_u32 s3, 3
    s_cselect_b64 s[26:27], s[22:23], s[28:29]
    s_cmp_lg_u32 s3, 4
    s_cbranch_scc1 L_nog1
    s_mov_b64 s[26:27], s[30:31]
    global_load_dwordx4 v[{GX}:{GX+3}], v7, s[16:17]
    global_load_dword v{GX+4}, v7, s[16:17] offset:16
    global_load_dwordx4 v[{GX+6}:{GX+9}], v7, s[34:35]
    global_load_dword v{GX+10}, v7, s[34:35] offset:16
    L_nog1:
    s_cmp_ge_u32 s3, s9
    s_cbranch_scc1 L_p_iss""")
    A("global_load_dwordx4 v[16:19], v5, s[16:17]")
    A("global_load_dword v20, v5, s[16:17] offset:16")
    if gdelay: A("s_cmp_lt_u32 s3, 3\ns_cbranch_scc1 L_nodel\ns_waitcnt vmcnt(0)\nL_nodel:")
    for oc in range(10):
        A(f"global_load_dwordx4 v[{W0+4*oc}:{W0+4*oc+3}], v4, s[26:27]{NT}")
        if oc<9: A("v_add_u32 v4, s6, v4")
    if wdearly:
        A(f"""s_setprio 0
    s_cmp_lg_u32 s14, 2
    s_cbranch_scc1 L_p_iss
    s_lshl4_add_u32 s8, s4, s12
    s_mul_i32 s8, s8, {4*1280}
    v_add_u32 v4, s8, v22""")
        for k in range(4):
            if k: A("s_nop 0")
            A(f"global_load_dwordx4 v[{WD+4*k}:{WD+4*k+3}], v4, s[32:33] offset:{1280*k}{NT}")
    A("L_p_iss:")
    A("s_setprio 0\ns_load_dword s42, s[40:41], 0\ns_barrier")
    stamp(1)
    A("s_branch L_p")
    A("L_kv:")
    K0=16; V0=80; PA=144; PB=152; S=160
    A("s_sub_u32 s6, s3, 5")
    if warm:
        A(""";NOPAD{
        s_mov_b64 exec, 0
        s_cmp_eq_u32 s6, 1
        s_cbranch_scc1 L_t1
        s_cmp_eq_u32 s6, 2
        s_cbranch_scc1 L_t2
        s_branch L_t0
        L_back:
        s_mov_b64 exec, -1
        ;NOPAD}""")
    A(f"""s_mul_i32 s7, s4, 1572864
    s_mul_i32 s8, s5, 49152
    s_add_u32 s7, s7, s8
    s_lshl_b32 s8, s6, 7
    s_add_u32 s7, s7, s8
    s_add_u32 s7, s7, {3072*384+3072}
    s_movk_i32 s8, 6144
    v_mad_u32_u24 v4, v1, s8, v3
    v_add_u32 v4, s7, v4
    v_mov_b32 v183, 0
    v_mov_b32 v182, 0
    ds_write_b64 v183, v[182:183] offset:{L_CNT}
    s_waitcnt lgkmcnt(0)
    s_load_dword s42, s[40:41], 0""")
    stamp(12)
    A("s_barrier")
    fill=[l.strip() for l in (f"""s_mul_i32 s45, s4, 3
    s_add_u32 s45, s45, s6
    s_mul_i32 s45, s45, 3072
    s_add_u32 s45, s45, {O_BASE}
    s_mul_i32 s8, s5, 384
    s_add_u32 s8, s8, s45
    v_lshl_add_u32 v185, v0, 7, s8
    @PRE
    s_mul_i32 s8, s4, 10240
    s_lshl_b32 s10, s6, 11
    s_add_u32 s8, s8, s10
    s_add_u32 s8, s8, {QG_BASE}
    v_lshl_add_u32 v5, v1, 8, v3
    v_add_u32 v5, s8, v5
    """+masks+f"""
    s_lshl4_add_u32 s8, s5, s45
    v_bfe_u32 v176, v0, 4, 1
    v_lshl_add_u32 v6, v176, 3, v2
    v_lshl_add_u32 v6, v6, 7, s8
    v_lshrrev_b32 v177, 5, v0
    v_lshl_add_u32 v177, v177, 1, v176
    v_and_b32 v176, 1, v1
    v_lshl_add_u32 v177, v176, 2, v177
    s_lshl_b32 s8, s6, 7
    v_add_u32 v178, s8, v3
    v_lshl_add_u32 v177, v177, 1, v178
    s_lshl_b32 s8, s6, 9
    v_lshrrev_b32 v176, 2, v2
    v_lshlrev_b32 v182, 6, v1
    v_add_u32 v182, s8, v182
    v_lshl_add_u32 v179, v176, 5, v182
    v_lshlrev_b32 v180, 3, v0
    v_add_u32 v181, s8, v180
    v_mov_b32 v184, 1""").split("\n") if l.strip()]
    seq=[]
    def gap():
        if not fill: A("s_nop 0"); return
        for _ in range(2):
            if not fill: break
            l=fill.pop(0)
            if l=="@PRE":
                if pretouch: A("s_mov_b64 exec, 7\nglobal_load_dword v192, v185, s[40:41] sc1\ns_mov_b64 exec, -1"); seq.append("T")
            else: A(l)
    def qissue(r):
        A(f"global_load_dwordx4 v[{r}:{r+3}], v5, s[40:41] sc1\nglobal_load_dwordx4 v[{r+4}:{r+7}], v5, s[40:41] offset:128 sc1")
    def thr(n=1):
        if cap and len(seq)+n>cap: A(f"s_waitcnt vmcnt({cap-n})")
    vnext=[0]
    def vload(throttle=False):
        oc=vnext[0]
        if oc>=16: return
        if throttle: thr()
        A(f"global_load_dwordx4 v[{V0+4*oc}:{V0+4*oc+3}], v4, s[20:21] offset:{oc*384-3072}{NT}"); seq.append(f"V{oc}"); vnext[0]+=1
    def after(n): return len(seq)-1-seq.index(n)
    for oc in range(16):
        thr()
        A(f"global_load_dwordx4 v[{K0+4*oc}:{K0+4*oc+3}], v4, s[18:19] offset:{oc*384-3072}{NT}"); seq.append(f"K{oc}"); gap()
    stamp(1)
    for oc in range(nv0+1):
        if oc==pa: qissue(PA); seq+=["PA0","PA1"]; gap(); stamp(2)
        if oc==pb: qissue(PB); seq+=["PB0","PB1"]; gap()
        if oc<nv0: vload(True); gap()
    while fill: gap()
    A("s_waitcnt lgkmcnt(0)\ns_add_u32 s42, s42, 0x01010101\ns_branch L_kv2")
    A("L_p:")
    if warm:
        A(";NOPAD{\ns_mov_b64 exec, 0")
        for w in range(5): A(f"s_cmp_eq_u32 s3, {w}\ns_cbranch_scc1 L_t{3+w}")
        A("L_back2:\ns_mov_b64 exec, -1\n;NOPAD}")
    A(masks)
    A(f"""v_bfe_u32 v7, v0, 4, 1
    v_lshl_add_u32 v7, v7, 7, v3
    s_waitcnt lgkmcnt(0)
    s_add_u32 s42, s42, 0x01010101
    s_mul_i32 s44, s4, 10240
    s_add_u32 s44, s44, {QG_BASE}
    s_cmp_ge_u32 s3, s9
    s_cbranch_scc1 L_p_done
    s_lshl_b32 s47, s46, 24
    s_xor_b32 s47, s47, s42
    s_lshl3_add_u32 s8, s3, s5
    s_lshl_b32 s8, s8, 8
    s_add_u32 s8, s8, s44
    v_add_u32 v6, s8, v7
    s_mov_b32 s10, 0x01000100
    s_mov_b32 s11, 0x03020302
    s_waitcnt vmcnt(10)""")
    for oc in range(10):
        A(f"v_perm_b32 v21, v{16+oc//2}, v{16+oc//2}, s{10+(oc&1)}")
        for d in range(4): A(f"v_and_b32 v{A0+4*oc+d}, v21, v{8+d}")
    for oc in range(10):
        if wdearly:
            if oc==0: A("s_waitcnt vmcnt(4)")
            if oc==6: A("s_cmp_eq_u32 s14, 2\ns_cbranch_scc1 L_p_go\ns_waitcnt vmcnt(0)\nL_p_go:")
        else: A(f"s_waitcnt vmcnt({9-oc})")
        A(f"v_mfma_f32_16x16x32_bf16 v[12:15], v[{A0+4*oc}:{A0+4*oc+3}], v[{W0+4*oc}:{W0+4*oc+3}], {'0' if oc==0 else 'v[12:15]'}")
    stamp(2)
    fold(12,16,"s47")
    A("global_store_dwordx4 v6, v[12:15], s[40:41]\ns_mov_b64 exec, -1")
    stamp(3)
    A("L_p_done:")
    A("v_mov_b32 v21, 0\ns_cmp_eq_u32 s14, 0\ns_cbranch_scc1 L_p_exit")
    A(f"""s_mul_i32 s15, s4, 3
    s_add_u32 s15, s15, s12
    s_mul_i32 s8, s15, {64*1280}
    s_add_u32 s8, s8, 3840
    v_add_u32 v4, s8, v22
    s_lshl4_add_u32 s8, s4, s12
    s_mul_i32 s8, s8, {4*1280}
    v_add_u32 v66, s8, v22
    s_mul_i32 s8, s15, 3072
    s_add_u32 s8, s8, {O_BASE}
    v_lshl_add_u32 v5, v0, 4, s8
    s_lshl_b32 s8, s15, 8
    s_lshl_b32 s10, s13, 15
    s_add_u32 s8, s8, s10
    s_add_u32 s8, s8, {F_BASE}
    v_add_u32 v6, s8, v7
    s_lshr_b32 s51, s42, 8
    s_lshr_b32 s52, s42, 16
    s_lshr_b32 s53, s42, 24
    v_mov_b32 v16, 0
    v_mov_b32 v17, 0
    v_mov_b32 v18, 0
    v_mov_b32 v19, 0
    s_lshl_b32 s8, s12, 7
    s_add_u32 s8, s8, s44
    s_add_u32 s8, s8, {3*2048}
    v_lshl_add_u32 v20, v1, 8, v3
    v_add_u32 v20, s8, v20
    s_lshl_b32 s8, s3, 8
    v_and_b32 v64, 15, v0
    v_lshl_add_u32 v64, v64, 4, s8
    v_lshrrev_b32 v65, 4, v0
    v_lshl_add_u32 v64, v65, 2, v64
    v_lshl_add_u32 v65, v1, 4, s8""")
    stamp(4)
    A("s_barrier")
    stamp(5)
    GA=24; T=40
    def guissue(r, fl=" sc1"):
        A(f"global_load_dwordx4 v[{r}:{r+3}], v20, s[40:41]{fl}\nglobal_load_dwordx4 v[{r+4}:{r+7}], v20, s[40:41] offset:2048{fl}")
    A(f"ds_read_b64 v[22:23], v21 offset:{L_GATE}")
    SA=132
    def oiss(r):
        A(f"""global_load_dwordx4 v[{r+8}:{r+11}], v5, s[40:41] offset:2048 sc1
        global_load_dwordx4 v[{r}:{r+3}], v5, s[40:41] sc1
        global_load_dwordx4 v[{r+4}:{r+7}], v5, s[40:41] offset:1024 sc1""")
    def woload(k):
        if k==7: A("v_add_u32 v4, 5120, v4")
        else: A("s_nop 0")
        A(f"global_load_dwordx4 v[{WO+4*k}:{WO+4*k+3}], v4, s[24:25] offset:{(1280*k-3840) if k<7 else 0}{NT}")
    A("s_cmp_lg_u32 s14, 2\ns_cbranch_scc1 L_nogu")
    guissue(GA)
    if not wdearly:
        for k in range(4): A(f"s_nop 0\nglobal_load_dwordx4 v[{WD+4*k}:{WD+4*k+3}], v66, s[32:33] offset:{1280*k}{NT}")
    A("L_nogu:")
    for k in range(n1): woload(k)
    stamp(10)
    A("s_barrier")
    stamp(8)
    oiss(SA)
    for k in range(n1,8): woload(k)
    stamp(6)
    A("s_cbranch_scc1 L_o_wait")
    poll2("gu",GA,None,T+4,8+3+(0 if wdearly else 4),0,guissue)
    stamp(7)
    red8regs(GA,T)
    C1=f2u(-2*math.sqrt(2/math.pi)*math.log2(math.e)); C3=f2u(0.044715)
    g=T; t=T+1
    bf16r(g)
    A(f"""v_mul_f32 v{t}, v{g}, v{g}
    v_mul_f32 v{t}, {hex(C3)}, v{t}
    v_fma_f32 v{t}, v{t}, v{g}, v{g}
    v_mul_f32 v{t}, {hex(C1)}, v{t}
    v_exp_f32 v{t}, v{t}
    v_add_f32 v{t}, 1.0, v{t}
    v_rcp_f32 v{t}, v{t}
    v_mul_f32 v{t}, v{g}, v{t}""")
    bf16r(t)
    A(f"""v_mul_f32_dpp v{t}, v{g}, v{t} row_ror:8{DPP}
    v_cvt_pk_bf16_f32 v{t}, v{t}, v{t}
    ds_write_b32 v64, v{t} offset:{L_HD}
    ds_read_b128 v[44:47], v65 offset:{L_HD}
    s_waitcnt lgkmcnt(0)""")
    for k in range(4):
        for d in range(4): A(f"v_and_b32 v{48+4*k+d}, v{44+k}, v{8+d}")
    A("s_waitcnt vmcnt(11)")
    for k in range(4): A(f"v_mfma_f32_16x16x32_bf16 v[16:19], v[{48+4*k}:{51+4*k}], v[{WD+4*k}:{WD+4*k+3}], {'0' if k==0 else 'v[16:19]'}")
    A("s_waitcnt lgkmcnt(0)")
    for k in range(4): A(f"v_mul_f32 v{16+k}, v{16+k}, v23")
    A("L_o_wait:")
    A("s_waitcnt lgkmcnt(0)")
    M=36; CK=37; R=40; W=120; SB=24
    tg=["s42","s51","s52","s53"]
    def chk(r,k,first=False):
        if first: A(f"v_xor_b32 v{CK}, {tg[k]}, v{r+k}")
        else: A(f"v_bitop3_b32 v{CK}, v{CK}, v{r+k}, {tg[k]} bitop3:0xf6")
    def ocheck(OA, base, w=True):
        ML=OA+8
        if w: A(f"s_waitcnt vmcnt({base+2})")
        A(f"v_max_f32_dpp v{M}, v{ML}, v{ML} {X1}{DPP}")
        chk(ML,0,True); chk(ML,1)
        A(f"v_max_f32_dpp v{M}, v{M}, v{M} {X2}{DPP}")
        chk(ML,2); chk(ML,3)
        A(f"v_max_f32_dpp v{M}, v{M}, v{M} {HM}{DPP}")
        A(f"v_sub_f32 v{M}, v{ML}, v{M}\nv_exp_f32 v{M}, v{M}")
        if w: A(f"s_waitcnt vmcnt({base})")
        for r in (OA,OA+4):
            for k in range(4): chk(r,k)
        A(f"v_cmp_ne_u32_sdwa vcc, v{CK}, v21 src0_sel:BYTE_0 src1_sel:BYTE_0")
    def omul(OA):
        for k in range(8): A(f"v_mul_f32 v{W+k}, v{OA+k}, v{M}")
        A(f"v_mul_f32 v{W+8}, v{OA+9}, v{M}")
    A(f"s_waitcnt vmcnt({8-n1})")
    stamp(12)
    oiss(SB)
    A("s_branch L_o_a")
    A("L_o_b:")
    oiss(SA)
    A(f"s_add_u32 s43, s43, 0x100\ns_cmp_ge_u32 s43, {spin*256}")
    ocheck(SB,3)
    A("s_cbranch_scc1 L_o_okb\ns_cbranch_vccnz L_o_loop\nL_o_okb:")
    stamp(11)
    omul(SB)
    A("s_branch L_o_ok2")
    A("L_o_loop:")
    oiss(SB)
    A("s_waitcnt vmcnt(3)")
    A("L_o_a:")
    ocheck(SA,3,False)
    A("s_cbranch_vccnz L_o_b")
    stamp(11)
    omul(SA)
    A("L_o_ok2:")
    for k in range(4): A(f"v_add_f32_dpp v{R+k}, v{W+k}, v{W+k} {HM} row_mask:0xf bank_mask:0x5")
    for k in range(4): A(f"v_add_f32_dpp v{R+k}, v{W+4+k}, v{W+4+k} {HM} row_mask:0xf bank_mask:0xa")
    for m in (X1,X2):
        for k in range(4): A(f"v_add_f32_dpp v{R+k}, v{R+k}, v{R+k} {m}{DPP}")
    for k in range(4): A(f"v_cvt_pk_bf16_f32 v{R+k}, v{R+k}, v{R+k}")
    LL=W+8
    extra=[f"v_add_f32_dpp v{LL}, v{LL}, v{LL} {m}{DPP}" for m in (X1,X2,HM)]+[f"v_rcp_f32 v{LL}, v{LL}", f"v_mul_f32 v22, v22, v{LL}"]
    AB=144
    def omfma(j):
        if j>=n1: A(f"s_waitcnt vmcnt({7-j+3})")
        A(f"v_mfma_f32_16x16x32_bf16 v[12:15], v[{AB+4*j}:{AB+4*j+3}], v[{WO+4*j}:{WO+4*j+3}], {'0' if j==0 else 'v[12:15]'}")
    lead=3
    for k in range(8):
        abuild(AB+4*k, R+(k&3), k<4)
        if k>=3 and extra: A(extra.pop(0))
        if k>=lead: omfma(k-lead)
    for j in range(8-lead,8): omfma(j)
    stamp(13)
    for k in range(4): A(f"v_fma_f32 v{12+k}, v{12+k}, v22, v{16+k}")
    fold(12,16)
    A("global_store_dwordx4 v6, v[12:15], s[40:41] sc1")
    stamp(9)
    if stamps: A("s_branch L_x3")
    A("s_endpgm")
    A("L_p_exit:")
    A("s_cmp_lg_u32 s3, 4\ns_cbranch_scc1 L_x1")
    G0=30
    A(f"s_cmp_lt_u32 s4, 24\ns_cbranch_scc1 L_g3\ns_waitcnt vmcnt(0)\nL_g3:\nv_mov_b32 v{G0}, 0\ns_mov_b32 s8, 0xffff0000")
    for k in range(5):
        a,b,c,d=G0+2,G0+3,G0+4,G0+5
        A(f"""v_lshlrev_b32 v{a}, 16, v{GX+k}
        v_and_b32 v{b}, s8, v{GX+k}
        v_lshlrev_b32 v{c}, 16, v{GX+6+k}
        v_and_b32 v{d}, s8, v{GX+6+k}
        v_pk_mul_f32 v[{a}:{b}], v[{a}:{b}], v[{c}:{d}]
        v_cvt_pk_bf16_f32 v{a}, v{a}, v{b}
        v_lshlrev_b32 v{b}, 16, v{a}
        v_and_b32 v{a}, s8, v{a}
        v_add_f32 v{G0}, v{G0}, v{b}
        v_add_f32 v{G0}, v{G0}, v{a}""")
    allred8("v_add_f32",[G0]); allred_oct("v_add_f32",G0,G0+1)
    bf16r(G0)
    A(f"""v_mul_f32 v{G0}, {hex(f2u(-math.log2(math.e)))}, v{G0}
    v_exp_f32 v{G0}, v{G0}
    v_add_f32 v{G0}, 1.0, v{G0}
    v_rcp_f32 v{G0}, v{G0}""")
    bf16r(G0)
    A(f"v_sub_f32 v{G0+1}, 1.0, v{G0}")
    bf16r(G0+1)
    A(f"ds_write_b64 v21, v[{G0}:{G0+1}] offset:{L_GATE}\ns_waitcnt lgkmcnt(0)\ns_barrier\ns_branch L_pubdone")
    A("L_x1:\ns_barrier")
    if stamps: A("s_branch L_x2")
    A("s_endpgm")
    A(";NEWBLOCK")
    A("L_kv2:")
    stamp(4)
    poll2("q",PA,PB if pb<17 else None,S+4,after('PA1'),after('PB1') if pb<17 else 0,qissue)
    stamp(5)
    vload()
    red8regs(PA,S)
    A(f"""v_cvt_pk_bf16_f32 v{S}, v{S}, v{S}
    ds_write_b16 v177, v{S} offset:{L_QB}
    ds_read_b128 v[12:15], v178 offset:{L_QB}
    s_waitcnt lgkmcnt(0)""")
    vload()
    for oc in range(16): A(f"v_dot2_f32_bf16 v{S+oc}, v{K0+4*oc}, v12, 0")
    for d in range(1,4):
        for oc in range(16): A(f"v_dot2c_f32_bf16 v{S+oc}, v{K0+4*oc+d}, v{12+d}")
        if d!=2: vload()
    T=PA
    for k in range(8): A(f"v_add_f32_dpp v{T+k}, v{S+k}, v{S+k} {HM} row_mask:0xf bank_mask:0x5")
    for k in range(8): A(f"v_add_f32_dpp v{T+k}, v{S+8+k}, v{S+8+k} {HM} row_mask:0xf bank_mask:0xa")
    for m in (X1,X2):
        for k in range(8): A(f"v_add_f32_dpp v{T+k}, v{T+k}, v{T+k} {m}{DPP}")
    A(f"""s_mov_b32 exec_lo, 0x11111111
    s_mov_b32 exec_hi, 0x11111111
    ds_write_b128 v179, v[{T}:{T+3}]
    ds_write_b128 v179, v[{T+4}:{T+7}] offset:16
    s_mov_b64 exec, 1
    ds_add_u32 v183, v184 offset:{L_CNT}
    s_mov_b64 exec, -1""")
    stamp(6)
    vload()
    A("L_sc:")
    A(f"""ds_read_b32 v16, v183 offset:{L_CNT}
    ds_read_b64 v[18:19], v180
    ds_read_b64 v[20:21], v180 offset:512
    ds_read_b64 v[22:23], v180 offset:1024
    s_waitcnt lgkmcnt(3)
    v_readfirstlane_b32 s8, v16
    s_cmp_lt_u32 s8, 3
    s_waitcnt lgkmcnt(0)
    s_cbranch_scc1 L_sc""")
    stamp(7)
    vload()
    A(f"""v_add_f32 v18, v18, v20
    v_add_f32 v19, v19, v21
    v_add_f32 v18, v18, v22
    v_add_f32 v19, v19, v23
    v_cvt_pk_bf16_f32 v18, v18, v19
    v_and_b32 v19, 0xffff0000, v18
    v_lshlrev_b32 v18, 16, v18
    v_mul_f32 v18, {hex(SCALE)}, v18
    v_mul_f32 v19, {hex(SCALE)}, v19
    v_cvt_pk_bf16_f32 v18, v18, v19
    v_and_b32 v19, 0xffff0000, v18
    v_lshlrev_b32 v18, 16, v18
    v_mul_f32 v18, {hex(LOG2E)}, v18
    v_mul_f32 v19, {hex(LOG2E)}, v19
    v_max_f32 v188, v18, v19""")
    allred8("v_max_f32",[188]); allred_oct("v_max_f32",188,20)
    vload()
    embed(188,ks=[0])
    A(f"""v_sub_f32 v18, v18, v188
    v_sub_f32 v19, v19, v188
    v_exp_f32 v18, v18
    v_exp_f32 v19, v19
    v_cvt_pk_bf16_f32 v20, v18, v18
    v_cvt_pk_bf16_f32 v21, v19, v19
    ds_write_b64 v181, v[20:21] offset:{L_PD}""")
    for j in range(4): A(f"ds_read_b128 v[{S+4*j}:{S+4*j+3}], v182 offset:{L_PD+16*j}")
    A("v_add_f32 v189, v18, v19")
    allred8("v_add_f32",[189]); allred_oct("v_add_f32",189,20)
    while vnext[0]<16: vload(); A("s_nop 0")
    stamp(3)
    A("s_barrier")
    embed(188,ks=[1,2,3])
    A("s_waitcnt lgkmcnt(0)")
    stamp(8)
    for oc in range(17):
        if oc<16:
            for d in range(4): A(f"v_and_b32 v{K0+4*oc+d}, v{S+oc}, v{8+d}")
        if 1<=oc<=8:
            k=oc-1; n=after('V%d'%k)
            if n<after('PA1'): A(f"s_waitcnt vmcnt({n})")
            A(f"v_mfma_f32_16x16x32_bf16 v[12:15], v[{K0+4*k}:{K0+4*k+3}], v[{V0+4*k}:{V0+4*k+3}], {'0' if k==0 else 'v[12:15]'}")
    for k in range(8,16):
        n=after('V%d'%k)
        if n<after('PA1'): A(f"s_waitcnt vmcnt({n})")
        A(f"v_mfma_f32_16x16x32_bf16 v[12:15], v[{K0+4*k}:{K0+4*k+3}], v[{V0+4*k}:{V0+4*k+3}], v[12:15]")
    stamp(9)
    A("s_mov_b64 exec, 0xff")
    if fast:
        A("s_cmp_lg_u64 s[48:49], 0\ns_cbranch_scc1 L_slowpub")
        A("global_store_dwordx4 v6, v[188:191], s[40:41] offset:2048\ns_mov_b64 exec, -1")
        fold(12,PA)
        A("global_store_dwordx4 v6, v[12:15], s[40:41]")
    else:
        A("global_store_dwordx4 v6, v[188:191], s[40:41] offset:2048 sc1\ns_mov_b64 exec, -1")
        fold(12,PA)
        A("global_store_dwordx4 v6, v[12:15], s[40:41] sc1")
    A("L_pubdone:")
    stamp(10)
    A("s_barrier")
    if stamps: A("s_waitcnt vmcnt(0)"); stamp(15)
    A(f"""s_cmp_lt_u32 s4, 24
    s_cbranch_scc1 L_x3
    s_lshr_b32 s10, s5, 1
    s_lshl3_add_u32 s8, s10, s4
    s_sub_u32 s8, s8, 24
    s_cmp_ge_u32 s8, 10
    s_cbranch_scc1 L_x3
    s_mov_b64 exec, -1
    s_and_b32 s11, s5, 1
    s_sub_u32 s12, s3, 4
    s_lshl_b32 s10, s8, 15
    s_mul_i32 s13, s12, 6144
    s_add_u32 s10, s10, s13
    s_lshl_b32 s13, s11, 7
    s_add_u32 s10, s10, s13
    s_add_u32 s10, s10, {F_BASE+2048}
    v_lshl_add_u32 v19, v1, 8, v3
    v_add_u32 v19, s10, v19
    s_lshl_b32 s15, s8, 7
    s_lshl3_add_u32 s15, s11, s15
    v_bfe_u32 v20, v0, 4, 1
    v_and_b32 v21, 1, v1
    v_lshl_add_u32 v20, v21, 1, v20
    v_lshl_add_u32 v21, v2, 2, v20
    v_lshlrev_b32 v21, 4, v21
    s_lshl_b32 s12, s12, 2
    v_add_u32 v22, s12, v21
    v_lshl_add_u32 v20, v20, 1, v3
    v_add_u32 v20, s15, v20
    v_mov_b32 v16, 0
    v_mov_b32 v17, 1
    v_mov_b32 v24, 0
    v_mov_b32 v25, 0
    v_mov_b32 v26, 0
    v_mov_b32 v27, 0
    s_mov_b64 s[6:7], -1
    s_mov_b64 s[8:9], -1
    s_mov_b64 s[10:11], -1
    s_barrier""")
    stamp(11)
    MK=["s[6:7]","s[8:9]","s[10:11]"]
    if outpre: A("global_load_ushort v30, v20, s[36:37] sc1")
    def fiss(d):
        for i in range(3):
            r=32+4*(3*d+i)
            A(f"s_or_b64 exec, {MK[i]}, 1\nglobal_load_dwordx4 v[{r}:{r+3}], v19, s[40:41] offset:{2048*(i-1)} sc1")
    A(";NOPAD{")
    for d in range(fdepth-1):
        fiss(d)
        A("s_sleep 2")
    A("L_f_loop:")
    for d in range(fdepth):
        fiss((d+fdepth-1)%fdepth)
        A(f"s_add_u32 s43, s43, 0x10000\ns_waitcnt vmcnt({3*(fdepth-1)})")
        for i in range(3):
            r=32+4*(3*d+i)
            A(f"s_mov_b64 exec, {MK[i]}\ns_cbranch_execz L_h{d}_{i}")
            cmpx(r)
            A(f"v_pk_add_f32 v[24:25], v[24:25], v[{r}:{r+1}]\nv_pk_add_f32 v[26:27], v[26:27], v[{r+2}:{r+3}]")
            A(f"s_andn2_b64 {MK[i]}, {MK[i]}, exec\nL_h{d}_{i}:")
        A(f"s_or_b64 s[54:55], {MK[0]}, {MK[1]}\ns_or_b64 s[54:55], s[54:55], {MK[2]}\ns_cbranch_scc0 L_f_ok")
        if fgap: A(f"s_sleep {fgap}")
    A(f"""s_cmp_lt_u32 s43, 0xf0000000
    s_cbranch_scc1 L_f_loop
    L_f_ok:
    s_mov_b64 exec, -1""")
    A(";NOPAD}")
    stamp(13)
    for k in range(2): A(f"v_add_f32_dpp v{28+k}, v{24+k}, v{24+k} row_ror:8 row_mask:0xf bank_mask:0x3")
    for k in range(2): A(f"v_add_f32_dpp v{28+k}, v{26+k}, v{26+k} row_ror:8 row_mask:0xf bank_mask:0xc")
    A(f"""v_permlane16_swap_b32 v28, v29
    v_add_f32 v28, v28, v29
    v_mov_b32 v29, v28
    v_permlane32_swap_b32 v28, v29
    v_add_f32 v28, v28, v29
    ds_write_b32 v22, v28
    s_mov_b64 exec, 1
    ds_add_rtn_u32 v18, v16, v17 offset:{L_CNT+4}
    s_mov_b64 exec, -1
    ds_read_b128 v[24:27], v21
    s_mov_b32 exec_hi, 0
    s_waitcnt lgkmcnt(0)
    v_readfirstlane_b32 s8, v18
    v_add_f32 v24, v24, v25
    v_add_f32 v26, v26, v27
    s_cmp_lg_u32 s8, 3
    s_cbranch_scc1 L_fin
    v_add_f32 v24, v24, v26
    v_cvt_pk_bf16_f32 v24, v24, v24
    global_store_short v20, v24, s[36:37]
    s_cmp_lg_u32 s15, 0
    s_cbranch_scc1 L_fin
    s_mov_b64 exec, 1
    v_mov_b32 v26, s42
    global_store_dword v20, v26, s[40:41]""")
    if stamps: A("s_branch L_fin\nL_x2:\ns_barrier\nL_x3:\ns_barrier")
    else: A("L_x3:")
    A("L_fin:")
    stamp(14)
    if stamps:
        A("s_mov_b64 exec, -1")
        A("s_waitcnt lgkmcnt(0)")
        if probe is not None:
            lo,hi,st,sign,wgsel=probe
            A("v_mov_b32 v251, 0\ns_or_b32 s98, s2, s3\ns_cbranch_scc1 L_dbgd\nv_mov_b32 v250, s60\nglobal_store_dword v251, v250, s[38:39] sc1\nL_dbgd:")
            A(f"s_cmp_lt_u32 s3, {lo}\ns_cbranch_scc1 L_end\ns_cmp_gt_u32 s3, {hi}\ns_cbranch_scc1 L_end")
            if wgsel is not None: A(f"s_cmp_lg_u32 s2, {wgsel}\ns_cbranch_scc1 L_end")
            A(f"L_dbgw:\ns_sleep 32\ns_memrealtime s[96:97]\ns_waitcnt lgkmcnt(0)\ns_sub_u32 s96, s96, s60\ns_cmp_lt_u32 s96, 3500\ns_cbranch_scc1 L_dbgw")
            A("global_load_dword v250, v251, s[38:39] sc1\ns_waitcnt vmcnt(0)\nv_readfirstlane_b32 s95, v250")
            A(f"s_sub_u32 s94, s{60+2*st}, s95\ns_mul_i32 s94, s94, {10*sign}\ns_add_u32 s94, s94, {6000 if sign>=0 else 30000}")
            A(f"s_min_u32 s94, s94, 50000")
            A(f"L_dbgx:\ns_sleep 2\ns_memrealtime s[96:97]\ns_waitcnt lgkmcnt(0)\ns_sub_u32 s96, s96, s95\ns_cmp_lt_u32 s96, s94\ns_cbranch_scc1 L_dbgx")
        else:
            A("L_dbgw:\ns_sleep 32\ns_memrealtime s[96:97]\ns_waitcnt lgkmcnt(0)\ns_sub_u32 s96, s96, s60\ns_cmp_lt_u32 s96, 1500\ns_cbranch_scc1 L_dbgw")
            for i in range(16): A(f"v_writelane_b32 v250, s{60+2*i}, {i}")
            A("v_writelane_b32 v250, s46, 16")
            A("v_writelane_b32 v250, s43, 17")
            A("s_getreg_b32 s98, hwreg(HW_REG_HW_ID)")
            A("v_writelane_b32 v250, s98, 18")
            A("s_lshl_b32 s98, s2, 3\ns_add_u32 s98, s98, s3\ns_lshl_b32 s98, s98, 8")
            A(f"s_add_u32 s98, s98, {STAMP_BASE}")
            A("v_lshl_add_u32 v251, v0, 2, s98")
            A("global_store_dword v251, v250, s[40:41]")
    A("L_end:")
    A("s_endpgm")
    if fast:
        A("L_slowpub:")
        A("global_store_dwordx4 v6, v[188:191], s[40:41] offset:2048 sc1\ns_mov_b64 exec, -1\ns_nop 4")
        fold(12,PA)
        A("global_store_dwordx4 v6, v[12:15], s[40:41] sc1\ns_branch L_pubdone")
    L=A.L
    def drop(pred, repl=None):
        for i,l in enumerate(L):
            if pred(l): L[i]= repl if repl else "    s_nop 0"
    if 'p' in skip: drop(lambda l: "global_store_dwordx4 v6, v[12:15], s[40:41]" in l and L.index(l)<L.index("L_p_done:") and False)
    if 'p' in skip:
        i=[k for k,l in enumerate(L) if l.strip()=="global_store_dwordx4 v6, v[12:15], s[40:41]"][0]; L[i]="    s_nop 0"
    if 'q' in skip or 'p' in skip:
        for nm in ("q","gu"): drop(lambda l: l.strip()==f"s_cbranch_scc1 L_{nm}_ok", f"    s_branch L_{nm}_loc")
        drop(lambda l: "s_cbranch_scc1 L_slowpub" in l)
    if 'g' in skip:
        drop(lambda l: l.strip()=="s_cbranch_scc1 L_nogu", "    s_branch L_nogu"); drop(lambda l: l.strip()=="s_cbranch_scc1 L_o_wait", "    s_branch L_o_wait")
    if 'o' in skip:
        drop(lambda l: "s_cbranch_vccnz" in l)
        idx=[k for k,l in enumerate(L) if l.strip() in ("global_store_dwordx4 v6, v[12:15], s[40:41]","global_store_dwordx4 v6, v[188:191], s[40:41] offset:2048") and k>L.index("L_kv2:")]
        for k in idx: L[k]="    s_nop 0"
    if 'f' in skip:
        drop(lambda l: l.strip()=="global_store_dwordx4 v6, v[12:15], s[40:41] sc1")
    if 'f' in skip or 'r' in skip:
        i=L.index("L_f_loop:"); L[i+1]="    s_branch L_f_ok"
    body,n=pad(A.L)
    if warm:
        body,pads=place_pads(body, entry_off=0, verbose=verbose, target=lambda k,N: "L_back" if k<3 else "L_back2")
        assert len(pads)<=8
        i=body.index("L_back2:")
        for k in range(len(pads),8): body.insert(i, f"L_t{k}:")
    nv = 256 if stamps else 200
    hdr=open(f"cdna_kernels/{NAME}.s.ref").read().split("; Override launch")[0] if header else ""
    txt=hdr+f"""; @launch grid=(256,1,1) block=(512,1,1) lds={LDS}
.amdgcn_target "amdgcn-amd-amdhsa--gfx950"
.text
.globl {kname}
.p2align 12
.fill 832, 4, 0xbf800000
.p2align 8
.type {kname},@function
"""+"\n".join(body)+f"""
.section .rodata,"a"
.p2align 6
.amdhsa_kernel {kname}
  .amdhsa_next_free_vgpr {nv}
  .amdhsa_next_free_sgpr 102
  .amdhsa_accum_offset {nv}
  .amdhsa_group_segment_fixed_size 0
  .amdhsa_kernarg_size 104
  .amdhsa_user_sgpr_count 2
  .amdhsa_user_sgpr_kernarg_segment_ptr 1
  .amdhsa_system_sgpr_workgroup_id_x 1
  .amdhsa_float_denorm_mode_32 3
.end_amdhsa_kernel
"""
    open(path,"w").write(txt)
    return n
if __name__=="__main__":
    from build import build
    p=f"h9.s"
    print("nops:",gen(p, verbose=True))
    print(build(p, NAME+"_kernel"))
```

```python
import re

TRANS = ("v_exp_f32","v_log_f32","v_rcp_f32","v_rsq_f32","v_sqrt_f32","v_sin_f32","v_cos_f32")

def regs_of(tok):
    tok = tok.strip()
    tok = tok.lstrip("-")
    if tok.startswith("abs(") or tok.startswith("|"):
        tok = tok.replace("abs(","").replace(")","").replace("|","")
    m = re.fullmatch(r"([vs])\[(\d+):(\d+)\]", tok)
    if m: return {f"{m.group(1)}{i}" for i in range(int(m.group(2)), int(m.group(3))+1)}
    m = re.fullmatch(r"([vs])(\d+)", tok)
    if m: return {tok}
    if tok in ("vcc","exec"): return {tok}
    if tok in ("vcc_lo","vcc_hi"): return {"vcc"}
    if tok in ("exec_lo","exec_hi"): return {"exec"}
    return set()

class Ins:
    def __init__(self, text):
        self.text = text
        t = text.split(";")[0].strip()
        self.label = t.endswith(":")
        self.directive = t.startswith(".") and not self.label
        self.empty = (t == "")
        self.op = ""
        self.dst=set(); self.src=set(); self.states=0
        self.valu=self.mfma=self.vmem=self.ds=self.dpp=self.perml=self.trans=self.dot=self.sdwa=self.store=self.rl=False
        self.srcC=set(); self.srcAB=set(); self.wide=set()
        if self.label or self.directive or self.empty: return
        parts = t.split(None,1)
        op = self.op = parts[0]
        rest = parts[1] if len(parts)>1 else ""
        ops = [o.strip() for o in rest.split(",")]
        cl=[]
        depth=0
        for o in ops:
            cl.append(o.split()[0] if o else "")
        R=[regs_of(o) for o in cl]
        self.states = 1
        if op=="s_nop": self.states=int(rest,0)+1
        if op.startswith("v_mfma"):
            self.mfma=True; self.dst=R[0]; self.srcAB=R[1]|R[2]; self.srcC=R[3]; self.src=self.srcAB|self.srcC
        elif op.startswith("v_"):
            self.valu=True
            self.dpp = "_dpp" in op
            self.sdwa = "_sdwa" in op and "dst_sel" in rest and "dst_sel:DWORD" not in rest
            self.perml = op.startswith("v_permlane")
            self.trans = op.split("_e32")[0].split("_e64")[0] in TRANS
            self.dot = op.startswith("v_dot")
            self.rl = op.startswith("v_readlane") or op.startswith("v_readfirstlane")
            self.dst=set(R[0]); self.src=set().union(*R[1:]) if len(R)>1 else set()
            if op.startswith("v_cmpx"): self.dst|={"exec"}
            if self.perml: self.dst|=R[1]; self.src|=R[0]
            if op.startswith("v_fmac") or op.startswith("v_dot2c") or self.sdwa or self.dpp or op.startswith("v_writelane"): self.src|=R[0]
            if op.startswith("v_add_co") or op.startswith("v_addc_co") or op.startswith("v_sub_co"):
                self.dst|=R[1]
            if op.startswith("v_cndmask") and len(R)==3: self.src|={"vcc"}
            if op.startswith("v_dot2c"): self.srcC=set(R[0]); self.srcAB=R[1]|R[2]
            elif self.dot: self.srcC=set(R[3]); self.srcAB=R[1]|R[2]
        elif op.startswith("global_") or op.startswith("buffer_"):
            self.vmem=True
            if "store" in op or "atomic" in op:
                self.store=True; self.src=set().union(*R)
                if "x4" in op or "x3" in op:
                    self.wide = R[1] if op.startswith("global_") else R[0]
            elif op in ("buffer_inv","buffer_wbl2"): pass
            else:
                self.dst=R[0]; self.src=set().union(*R[1:])
        elif op.startswith("ds_"):
            self.ds=True
            if "read" in op or "permute" in op or "rtn" in op or "swizzle" in op:
                self.dst=R[0]; self.src=set().union(*R[1:])
            else: self.src=set().union(*R)

def need(p, c):
    n=0
    vd={r for r in p.dst if r[0]=="v" and r!="vcc"}
    sd=p.dst-vd
    if p.valu:
        if vd & c.src:
            if c.dpp: n=max(n,2)
            if c.perml: n=max(n,2)
            if c.mfma: n=max(n,2)
            if c.rl: n=max(n,1)
            if p.trans: n=max(n,1)
            if p.sdwa: n=max(n,1)
        if p.sdwa and (vd & c.dst) and c.valu: n=max(n,1)
        if p.dot and (vd & (c.src|c.dst)):
            if c.dot and c.op==p.op and not (vd & c.srcAB): pass
            else: n=max(n,3)
        s2 = sd-{"exec"}
        if s2 & c.src:
            if c.valu: n=max(n, 4 if (c.rl or c.op.startswith("v_writelane")) else 2)
            if c.vmem: n=max(n,5)
        if "exec" in sd:
            if c.dpp: n=max(n,5)
            if c.mfma or c.perml or c.rl or c.op.startswith("v_writelane"): n=max(n,4)
            if c.valu and "exec" in c.src: n=max(n,2)
    if p.mfma:
        passes = 8 if ("32x32" in p.op or "16x16x4_f32" in p.op) else 4
        raw = {4:8, 8:12}[passes]
        if c.mfma:
            if p.dst & c.srcAB: n=max(n,raw)
            if p.dst & c.srcC and p.dst != c.srcC: n=max(n,raw-2)
            if p.dst & c.dst and not (p.dst & c.srcC): n=max(n,raw)
        elif (p.dst & (c.src|c.dst)): n=max(n,raw)
        if c.valu and (p.srcC & c.dst): n=max(n,{4:3,8:7}[passes])
    if p.wide and c.valu and (p.wide & c.dst): n=max(n,2)
    if p.wide and (c.vmem or c.ds) and (p.wide & c.dst): n=max(n,1)
    return n

def pad(lines):
    out=[]; hist=[]
    nins=0
    for ln in lines:
        c=Ins(ln)
        if c.label or c.directive or c.empty:
            out.append(ln); continue
        dist=0; req=0
        for p in reversed(hist[-24:]):
            k=need(p,c)-dist
            if k>req: req=k
            dist+=p.states
            if dist>=20: break
        if req>0:
            nop=Ins(f"s_nop {req-1}"); out.append(f"    s_nop {req-1}"); hist.append(nop); nins+=1
        out.append(ln); hist.append(c)
        if c.op in ("s_branch","s_endpgm","s_setpc_b64"): hist=[]
    return out, nins

class Asm:
    def __init__(self): self.L=[]
    def __call__(self, s):
        for l in s.split("\n"):
            l=l.strip()
            if not l: continue
            self.L.append(l if (l.endswith(":") or l.startswith(".") or l.startswith(";")) else "    "+l)

import subprocess, tempfile, os
def sizes(lines):
    labs=set()
    for l in lines:
        t=l.split(";")[0].strip()
        if t.endswith(":"): labs.add(t[:-1])
    extra=[f"L_t{k}:" for k in range(40) if f"L_t{k}" not in labs]
    src='.amdgcn_target "amdgcn-amd-amdhsa--gfx950"\n.text\n'+"\n".join(lines)+"\n"+"\n".join(extra)+"\ns_endpgm\n"
    d=tempfile.mkdtemp()
    open(d+"/a.s","w").write(src)
    r=subprocess.run(["clang","-x","assembler","-target","amdgcn-amd-amdhsa","-mcpu=gfx950","-c",d+"/a.s","-o",d+"/a.o"],capture_output=True,text=True)
    if r.returncode: print(r.stderr[:3000]); raise SystemExit(1)
    o=subprocess.run(["llvm-objdump","-d","--mcpu=gfx950",d+"/a.o"],capture_output=True,text=True).stdout
    addrs=[int(m.group(1),16) for m in re.finditer(r"// ([0-9A-F]{12}):",o)]
    sz=[]; k=0
    for l in lines:
        c=Ins(l)
        if c.label or c.empty or c.directive: sz.append(0)
        else: sz.append(addrs[k+1]-addrs[k]); k+=1
    return sz

def place_pads(lines, entry_off=0x300, nwarm=3, verbose=False, target=None):
    sz=sizes(lines)
    out=[]; addr=entry_off
    def blk_end(a):
        a&=~63
        return min(a+1088, (a|4095)+1)
    end=blk_end(addr); forb=0; pads=[]
    i=0; n=len(lines)
    while i<n:
        l=lines[i]; t=l.strip()
        if t==";NOPAD{":
            j=i; a=addr
            while lines[j].strip()!=";NOPAD}": a+=sz[j]; j+=1
            if a>=end+64-4+1:
                fill=max(0,(end-addr)//4)
                if fill>3:
                    out+= [f"    s_branch L_t{len(pads)}", f".fill {fill-1}, 4, 0xbf800000"]
                else: out+= ["    s_nop 0"]*fill
                addr+=4*fill
                if verbose: print(f"  live fill {fill} nops before NOPAD at {addr:#x}")
                out.append(f"L_t{len(pads)}:"); out.append("@PAD"); pads.append(addr); end=blk_end(addr); addr+=4
            forb+=1
        elif t==";NOPAD}": forb-=1
        elif t==";NEWBLOCK":
            tgt=end
            if blk_end(tgt)-tgt<256: tgt=blk_end(tgt)
            if tgt-addr<512:
                fill=(tgt-addr)//4
                if fill>0: out.append(f".fill {fill}, 4, 0xbf800000"); addr+=4*fill
                end=tgt
        if sz[i] and addr>=end and not forb:
            assert addr<end+64, f"missed line at {addr:#x} (end {end:#x})"
            out.append(f"L_t{len(pads)}:"); out.append("@PAD"); pads.append(addr); end=blk_end(addr); addr+=4
        out.append(l); addr+=sz[i]; i+=1
    k=0; res=[]
    for l in out:
        if l=="@PAD":
            tgt=f"L_t{k+nwarm}" if k+nwarm<len(pads) else "L_back"
            if target: tgt=target(k,len(pads))
            res.append(f"    s_cbranch_execz {tgt}"); k+=1
        else: res.append(l)
    if verbose: print("pads at",[hex(p) for p in pads],"end",hex(addr))
    return res, pads
```

```python
import sys, struct, math
sys.path.insert(0,"gen"); sys.path.insert(0,"exp")
from asmlib import Asm, pad, place_pads
NAME="gated_mix__sliding_block_cached__glu_gated_geglu__decode"
def f2u(x): return struct.unpack("<I", struct.pack("<f", x))[0]
LOG2E=f2u(math.log2(math.e)); SCALE=f2u(192**-0.5)
QG_BASE=0x1000; O_BASE=0x52000; F_BASE=0xA0000; STAMP_BASE=0x100000
DPP=" row_mask:0xf bank_mask:0xf"
X1="quad_perm:[1,0,3,2]"; X2="quad_perm:[2,3,0,1]"; HM="row_half_mirror"
L_SC=0; L_GATE=1536; L_CNT=1544; L_QB=1600; L_PD=2048; L_HD=3584
LDS=3584+1024

def gen(path, kname=NAME+"_kernel", nt=True, stamps=False, pa=3, pb=6, cap=10, nv0=9, n1=3, n3=0, bsleep=9, mlrep=True, wdearly=False, gdelay=False, spin=1<<16, warm=True, header=True,
        olsleep=0, fback=3, fthr=24, gupos=0, probe=None, fast=True, pretouch=True, verbose=False, outpre=True, osets=2, skip='', fdepth=2, fgap=0):
    A=Asm()
    NT=" nt" if nt else ""
    def stamp(i):
        if stamps: A(f"s_memrealtime s[{60+2*i}:{61+2*i}]")
    masks="""v_mov_b32 v12, 0xffff
        v_mov_b32 v13, 0
        v_lshlrev_b64 v[12:13], v3, v[12:13]
        v_cmp_gt_u32 vcc, 4, v2
        s_nop 1
        v_cndmask_b32 v8, 0, v12, vcc
        v_cndmask_b32 v9, 0, v13, vcc
        v_cndmask_b32 v10, v12, 0, vcc
        v_cndmask_b32 v11, v13, 0, vcc"""
    def embed(r, tag="s42", ks=range(4)):
        for k in ks: A(f"v_mov_b32_sdwa v{r+k}, {tag} dst_sel:BYTE_0 dst_unused:UNUSED_PRESERVE src0_sel:BYTE_{k}")
    def fold(acc,tmp,tag="s42"):
        for k in range(4): A(f"v_permlane32_swap_b32 v{acc+k}, v{tmp+k}")
        for k in range(4): A(f"v_add_f32_dpp v{acc+k}, v{tmp+k}, v{acc+k} row_ror:8{DPP}")
        embed(acc,tag)
        A("s_mov_b64 exec, 0x00ff00ff")
    def cmpx(r,n=4):
        for k in range(n): A(f"v_cmpx_eq_u32_sdwa vcc, v{r+k}, s42 src0_sel:BYTE_0 src1_sel:BYTE_{k}")
    def checkq(r, t):
        A(f"v_xor_b32_sdwa v{t}, v{r+3}, s42 dst_sel:DWORD dst_unused:UNUSED_PAD src0_sel:BYTE_0 src1_sel:BYTE_3")
        A(f"v_xor_b32_sdwa v{t+1}, v{r+7}, s42 dst_sel:DWORD dst_unused:UNUSED_PAD src0_sel:BYTE_0 src1_sel:BYTE_3")
        A(";NOPAD{")
        cmpx(r,3); cmpx(r+4,3)
        A(f"v_cmpx_gt_u32 vcc, 8, v{t}\nv_cmpx_gt_u32 vcc, 8, v{t+1}")
        A("s_cmp_eq_u64 exec, -1\ns_mov_b64 exec, -1\n;NOPAD}")
    def poll2(name, PA, PB, t, wa, wb, reissue):
        A(f"s_waitcnt vmcnt({wa})")
        if PB is not None:
            checkq(PA,t)
            A(f"s_cbranch_scc1 L_{name}_ok")
            A(f"s_add_u32 s43, s43, 1\ns_waitcnt vmcnt({wb})")
            for k in range(4): A(f"v_mov_b64 v[{PA+2*k}:{PA+2*k+1}], v[{PB+2*k}:{PB+2*k+1}]")
        A(f"L_{name}_chk:")
        checkq(PA,t)
        A(f"s_cbranch_scc1 L_{name}_ok")
        reissue(PA)
        A(f"s_cmp_lg_u32 s43, 3\ns_cbranch_scc1 L_{name}_nowb\nbuffer_wbl2 sc1\nL_{name}_nowb:")
        A(f"s_add_u32 s43, s43, 1\ns_cmp_lt_u32 s43, {spin}\ns_waitcnt vmcnt(0)\ns_cbranch_scc1 L_{name}_chk")
        A(f"L_{name}_ok:")
        A(f"v_cmp_ne_u32 s[48:49], s46, v{t}")
        A(f"s_cmp_eq_u64 s[48:49], 0\ns_cbranch_scc1 L_{name}_loc\nbuffer_wbl2 sc1\nL_{name}_loc:")
    def bf16r(r):
        A(f"v_cvt_pk_bf16_f32 v{r}, v{r}, v{r}\nv_and_b32 v{r}, 0xffff0000, v{r}")
    def allred_oct(op, r, t):
        A(f"{op}_dpp v{r}, v{r}, v{r} row_ror:8{DPP}")
        A(f"v_mov_b32 v{t}, v{r}\nv_permlane16_swap_b32 v{r}, v{t}\n{op} v{r}, v{r}, v{t}")
        A(f"v_mov_b32 v{t}, v{r}\nv_permlane32_swap_b32 v{r}, v{t}\n{op} v{r}, v{r}, v{t}")
    def allred8(op, rs):
        for m in (X1,X2,HM):
            for r in rs: A(f"{op}_dpp v{r}, v{r}, v{r} {m}{DPP}")
    def red8regs(a, b):
        for k in range(4): A(f"v_add_f32_dpp v{b+k}, v{a+k}, v{a+k} row_ror:8 row_mask:0xf bank_mask:0x3")
        for k in range(4): A(f"v_add_f32_dpp v{b+k}, v{a+4+k}, v{a+4+k} row_ror:8 row_mask:0xf bank_mask:0xc")
        A(f"v_permlane16_swap_b32 v{b}, v{b+1}\nv_permlane16_swap_b32 v{b+2}, v{b+3}")
        A(f"v_add_f32 v{b}, v{b}, v{b+1}\nv_add_f32 v{b+2}, v{b+2}, v{b+3}")
        A(f"v_permlane32_swap_b32 v{b}, v{b+2}\nv_add_f32 v{b}, v{b}, v{b+2}")
    def abuild(dst, src, low):
        for d in range(4):
            own = (d<2)==low
            if own: A(f"v_and_b32 v{dst+d}, v{src}, v{8+d}")
            else: A(f"v_and_b32_dpp v{dst+d}, v{src}, v{8+d} {HM}{DPP}")

    A(f"{kname}:")
    stamp(0)
    A("""s_cmp_ge_u32 s2, 256
    s_cbranch_scc1 L_end
    s_load_dwordx16 s[16:31], s[0:1], 0
    s_load_dwordx8 s[32:39], s[0:1], 64
    s_load_dwordx2 s[40:41], s[0:1], 96
    v_lshrrev_b32 v1, 6, v0
    v_and_b32 v0, 63, v0
    v_readfirstlane_b32 s3, v1
    s_and_b32 s4, s2, 7
    s_lshr_b32 s5, s2, 6
    s_lshl3_add_u32 s4, s5, s4
    s_bfe_u32 s5, s2, 0x30003
    v_lshrrev_b32 v1, 3, v0
    v_and_b32 v2, 7, v0
    v_lshlrev_b32 v3, 4, v2
    s_mov_b32 s43, 0
    s_getreg_b32 s46, hwreg(HW_REG_XCC_ID, 0, 3)
    s_cmp_ge_u32 s3, 5
    s_cbranch_scc1 L_kv""")
    W0=24; A0=120; WO=72; WD=104; GX=72
    A(f"""s_setprio 1
    s_mul_i32 s7, s4, 3
    s_add_u32 s7, s7, s3
    s_movk_i32 s6, 0x3000
    s_cmp_lt_u32 s3, 3
    s_cselect_b32 s7, s7, s4
    s_cselect_b32 s6, s6, 0xc00
    s_mul_i32 s8, s5, 80
    v_mad_u32_u24 v5, v1, 10, s8
    v_mul_u32_u24 v4, s6, v5
    s_lshl_b32 s7, s7, 7
    v_add3_u32 v4, v4, v3, s7
    v_lshlrev_b32 v5, 1, v5
    s_cmp_ge_u32 s4, 24
    s_cselect_b32 s9, 3, 5
    s_lshl2_add_u32 s12, s5, s3
    s_cmp_eq_u32 s5, 7
    s_subb_u32 s12, s12, 0
    s_mul_i32 s13, s12, 43
    s_lshr_b32 s13, s13, 7
    s_mul_i32 s8, s13, 3
    s_sub_u32 s12, s12, s8
    s_movk_i32 s8, 10240
    v_mad_u32_u24 v22, v1, s8, v3
    s_lshl_b32 s10, s13, 7
    v_add_u32 v22, s10, v22
    s_cmp_lt_u32 s12, 2
    s_cselect_b32 s14, 2, 1
    s_cmp_ge_u32 s4, 24
    s_cselect_b32 s14, 1, s14
    s_cmp_lt_u32 s5, 6
    s_cselect_b32 s8, 4, 3
    s_cmp_ge_u32 s3, s8
    s_cselect_b32 s14, 0, s14
    v_mul_u32_u24 v7, 20, v0
    s_waitcnt lgkmcnt(0)
    s_cmp_lt_u32 s3, 3
    s_cselect_b64 s[26:27], s[22:23], s[28:29]
    s_cmp_lg_u32 s3, 4
    s_cbranch_scc1 L_nog1
    s_mov_b64 s[26:27], s[30:31]
    global_load_dwordx4 v[{GX}:{GX+3}], v7, s[16:17]
    global_load_dword v{GX+4}, v7, s[16:17] offset:16
    global_load_dwordx4 v[{GX+6}:{GX+9}], v7, s[34:35]
    global_load_dword v{GX+10}, v7, s[34:35] offset:16
    L_nog1:
    s_cmp_ge_u32 s3, s9
    s_cbranch_scc1 L_p_iss""")
    A("global_load_dwordx4 v[16:19], v5, s[16:17]")
    A("global_load_dword v20, v5, s[16:17] offset:16")
    if gdelay: A("s_cmp_lt_u32 s3, 3\ns_cbranch_scc1 L_nodel\ns_waitcnt vmcnt(0)\nL_nodel:")
    for oc in range(10):
        A(f"global_load_dwordx4 v[{W0+4*oc}:{W0+4*oc+3}], v4, s[26:27]{NT}")
        if oc<9: A("v_add_u32 v4, s6, v4")
    if wdearly:
        A(f"""s_setprio 0
    s_cmp_lg_u32 s14, 2
    s_cbranch_scc1 L_p_iss
    s_lshl4_add_u32 s8, s4, s12
    s_mul_i32 s8, s8, {4*1280}
    v_add_u32 v4, s8, v22""")
        for k in range(4):
            if k: A("s_nop 0")
            A(f"global_load_dwordx4 v[{WD+4*k}:{WD+4*k+3}], v4, s[32:33] offset:{1280*k}{NT}")
    A("L_p_iss:")
    A("s_setprio 0\ns_load_dword s42, s[40:41], 0\ns_barrier")
    stamp(1)
    A("s_branch L_p")
    A("L_kv:")
    K0=16; V0=80; PA=144; PB=152; S=160
    A("s_sub_u32 s6, s3, 5")
    if warm:
        A(""";NOPAD{
        s_mov_b64 exec, 0
        s_cmp_eq_u32 s6, 1
        s_cbranch_scc1 L_t1
        s_cmp_eq_u32 s6, 2
        s_cbranch_scc1 L_t2
        s_branch L_t0
        L_back:
        s_mov_b64 exec, -1
        ;NOPAD}""")
    A(f"""s_mul_i32 s7, s4, 1572864
    s_mul_i32 s8, s5, 49152
    s_add_u32 s7, s7, s8
    s_lshl_b32 s8, s6, 7
    s_add_u32 s7, s7, s8
    s_add_u32 s7, s7, {3072*384+3072}
    s_movk_i32 s8, 6144
    v_mad_u32_u24 v4, v1, s8, v3
    v_add_u32 v4, s7, v4
    v_mov_b32 v183, 0
    v_mov_b32 v182, 0
    ds_write_b64 v183, v[182:183] offset:{L_CNT}
    s_waitcnt lgkmcnt(0)
    s_load_dword s42, s[40:41], 0""")
    stamp(12)
    A("s_barrier")
    fill=[l.strip() for l in (f"""s_mul_i32 s45, s4, 3
    s_add_u32 s45, s45, s6
    s_mul_i32 s45, s45, 3072
    s_add_u32 s45, s45, {O_BASE}
    s_mul_i32 s8, s5, 384
    s_add_u32 s8, s8, s45
    v_lshl_add_u32 v185, v0, 7, s8
    @PRE
    s_mul_i32 s8, s4, 10240
    s_lshl_b32 s10, s6, 11
    s_add_u32 s8, s8, s10
    s_add_u32 s8, s8, {QG_BASE}
    v_lshl_add_u32 v5, v1, 8, v3
    v_add_u32 v5, s8, v5
    """+masks+f"""
    s_lshl4_add_u32 s8, s5, s45
    v_bfe_u32 v176, v0, 4, 1
    v_lshl_add_u32 v7, v2, 7, s8
    s_lshr_b32 s10, s5, 2
    v_xor_b32 v6, s10, v176
    v_lshl_add_u32 v6, v6, 10, v7
    v_lshrrev_b32 v177, 5, v0
    v_lshl_add_u32 v177, v177, 1, v176
    v_and_b32 v176, 1, v1
    v_lshl_add_u32 v177, v176, 2, v177
    s_lshl_b32 s8, s6, 7
    v_add_u32 v178, s8, v3
    v_lshl_add_u32 v177, v177, 1, v178
    s_lshl_b32 s8, s6, 9
    v_lshrrev_b32 v176, 2, v2
    v_lshlrev_b32 v182, 6, v1
    v_add_u32 v182, s8, v182
    v_lshl_add_u32 v179, v176, 5, v182
    v_lshlrev_b32 v180, 3, v0
    v_add_u32 v181, s8, v180
    v_mov_b32 v184, 1""").split("\n") if l.strip()]
    seq=[]
    def gap():
        if not fill: A("s_nop 0"); return
        for _ in range(2):
            if not fill: break
            l=fill.pop(0)
            if l=="@PRE":
                if pretouch: A("s_mov_b64 exec, 7\nglobal_load_dword v192, v185, s[40:41] sc1\ns_mov_b64 exec, -1"); seq.append("T")
            else: A(l)
    def qissue(r):
        A(f"global_load_dwordx4 v[{r}:{r+3}], v5, s[40:41] sc1\nglobal_load_dwordx4 v[{r+4}:{r+7}], v5, s[40:41] offset:128 sc1")
    def thr(n=1):
        if cap and len(seq)+n>cap: A(f"s_waitcnt vmcnt({cap-n})")
    vnext=[0]
    def vload(throttle=False):
        oc=vnext[0]
        if oc>=16: return
        if throttle: thr()
        A(f"global_load_dwordx4 v[{V0+4*oc}:{V0+4*oc+3}], v4, s[20:21] offset:{oc*384-3072}{NT}"); seq.append(f"V{oc}"); vnext[0]+=1
    def after(n): return len(seq)-1-seq.index(n)
    for oc in range(16):
        thr()
        A(f"global_load_dwordx4 v[{K0+4*oc}:{K0+4*oc+3}], v4, s[18:19] offset:{oc*384-3072}{NT}"); seq.append(f"K{oc}"); gap()
    stamp(1)
    for oc in range(nv0+1):
        if oc==pa: qissue(PA); seq+=["PA0","PA1"]; gap(); stamp(2)
        if oc==pb: qissue(PB); seq+=["PB0","PB1"]; gap()
        if oc<nv0: vload(True); gap()
    while fill: gap()
    A("s_waitcnt lgkmcnt(0)\ns_add_u32 s42, s42, 0x01010101\ns_branch L_kv2")
    A("L_p:")
    if warm:
        A(";NOPAD{\ns_mov_b64 exec, 0")
        for w in range(5): A(f"s_cmp_eq_u32 s3, {w}\ns_cbranch_scc1 L_t{3+w}")
        A("L_back2:\ns_mov_b64 exec, -1\n;NOPAD}")
    A(masks)
    A(f"""v_bfe_u32 v7, v0, 4, 1
    v_lshl_add_u32 v7, v7, 7, v3
    s_waitcnt lgkmcnt(0)
    s_add_u32 s42, s42, 0x01010101
    s_mul_i32 s44, s4, 10240
    s_add_u32 s44, s44, {QG_BASE}
    s_cmp_ge_u32 s3, s9
    s_cbranch_scc1 L_p_done
    s_lshl_b32 s47, s46, 24
    s_xor_b32 s47, s47, s42
    s_lshl3_add_u32 s8, s3, s5
    s_lshl_b32 s8, s8, 8
    s_add_u32 s8, s8, s44
    v_add_u32 v6, s8, v7
    s_mov_b32 s10, 0x01000100
    s_mov_b32 s11, 0x03020302
    s_waitcnt vmcnt(10)""")
    for oc in range(10):
        A(f"v_perm_b32 v21, v{16+oc//2}, v{16+oc//2}, s{10+(oc&1)}")
        for d in range(4): A(f"v_and_b32 v{A0+4*oc+d}, v21, v{8+d}")
    for oc in range(10):
        if wdearly:
            if oc==0: A("s_waitcnt vmcnt(4)")
            if oc==6: A("s_cmp_eq_u32 s14, 2\ns_cbranch_scc1 L_p_go\ns_waitcnt vmcnt(0)\nL_p_go:")
        else: A(f"s_waitcnt vmcnt({9-oc})")
        A(f"v_mfma_f32_16x16x32_bf16 v[12:15], v[{A0+4*oc}:{A0+4*oc+3}], v[{W0+4*oc}:{W0+4*oc+3}], {'0' if oc==0 else 'v[12:15]'}")
    stamp(2)
    fold(12,16,"s47")
    A("global_store_dwordx4 v6, v[12:15], s[40:41]\ns_mov_b64 exec, -1")
    stamp(3)
    A("L_p_done:")
    A("v_mov_b32 v21, 0\ns_cmp_eq_u32 s14, 0\ns_cbranch_scc1 L_p_exit")
    A(f"""s_mul_i32 s15, s4, 3
    s_add_u32 s15, s15, s12
    s_mul_i32 s8, s15, {64*1280}
    s_add_u32 s8, s8, 3840
    v_add_u32 v4, s8, v22
    s_lshl4_add_u32 s8, s4, s12
    s_mul_i32 s8, s8, {4*1280}
    v_add_u32 v66, s8, v22
    s_mul_i32 s8, s15, 3072
    s_add_u32 s8, s8, {O_BASE}
    v_lshl_add_u32 v5, v0, 4, s8
    v_add_u32 v67, s8, v3
    s_lshl_b32 s8, s15, 8
    s_lshl_b32 s10, s13, 15
    s_add_u32 s8, s8, s10
    s_add_u32 s8, s8, {F_BASE}
    v_add_u32 v6, s8, v7
    s_lshr_b32 s51, s42, 8
    s_lshr_b32 s52, s42, 16
    s_lshr_b32 s53, s42, 24
    v_mov_b32 v16, 0
    v_mov_b32 v17, 0
    v_mov_b32 v18, 0
    v_mov_b32 v19, 0
    s_lshl_b32 s8, s12, 7
    s_add_u32 s8, s8, s44
    s_add_u32 s8, s8, {3*2048}
    v_lshl_add_u32 v20, v1, 8, v3
    v_add_u32 v20, s8, v20
    s_lshl_b32 s8, s3, 8
    v_and_b32 v64, 15, v0
    v_lshl_add_u32 v64, v64, 4, s8
    v_lshrrev_b32 v65, 4, v0
    v_lshl_add_u32 v64, v65, 2, v64
    v_lshl_add_u32 v65, v1, 4, s8""")
    stamp(4)
    A("s_barrier")
    stamp(5)
    GA=24; T=40
    def guissue(r, fl=" sc1"):
        A(f"global_load_dwordx4 v[{r}:{r+3}], v20, s[40:41]{fl}\nglobal_load_dwordx4 v[{r+4}:{r+7}], v20, s[40:41] offset:2048{fl}")
    A(f"ds_read_b64 v[22:23], v21 offset:{L_GATE}")
    SA=132
    def oiss(r):
        A(f"""global_load_dwordx4 v[{r+8}:{r+11}], v{5 if mlrep else 67}, s[40:41] offset:2048 sc1
        global_load_dwordx4 v[{r}:{r+3}], v5, s[40:41] sc1
        global_load_dwordx4 v[{r+4}:{r+7}], v5, s[40:41] offset:1024 sc1""")
    def woload(k):
        if k==7: A("v_add_u32 v4, 5120, v4")
        else: A("s_nop 0")
        A(f"global_load_dwordx4 v[{WO+4*k}:{WO+4*k+3}], v4, s[24:25] offset:{(1280*k-3840) if k<7 else 0}{NT}")
    A("s_cmp_lg_u32 s14, 2\ns_cbranch_scc1 L_nogu")
    guissue(GA)
    if not wdearly:
        for k in range(4): A(f"s_nop 0\nglobal_load_dwordx4 v[{WD+4*k}:{WD+4*k+3}], v66, s[32:33] offset:{1280*k}{NT}")
    A("L_nogu:")
    for k in range(n1): woload(k)
    stamp(10)
    A("s_barrier")
    stamp(8)
    oiss(SA)
    for k in range(n1,8-n3): woload(k)
    stamp(6)
    A("s_cbranch_scc1 L_o_wait")
    poll2("gu",GA,None,T+4,8-n3+3+(0 if wdearly else 4),0,guissue)
    stamp(7)
    red8regs(GA,T)
    C1=f2u(-2*math.sqrt(2/math.pi)*math.log2(math.e)); C3=f2u(0.044715)
    g=T; t=T+1
    bf16r(g)
    A(f"""v_mul_f32 v{t}, v{g}, v{g}
    v_mul_f32 v{t}, {hex(C3)}, v{t}
    v_fma_f32 v{t}, v{t}, v{g}, v{g}
    v_mul_f32 v{t}, {hex(C1)}, v{t}
    v_exp_f32 v{t}, v{t}
    v_add_f32 v{t}, 1.0, v{t}
    v_rcp_f32 v{t}, v{t}
    v_mul_f32 v{t}, v{g}, v{t}""")
    bf16r(t)
    A(f"""v_mul_f32_dpp v{t}, v{g}, v{t} row_ror:8{DPP}
    v_cvt_pk_bf16_f32 v{t}, v{t}, v{t}
    ds_write_b32 v64, v{t} offset:{L_HD}
    ds_read_b128 v[44:47], v65 offset:{L_HD}
    s_waitcnt lgkmcnt(0)""")
    for k in range(4):
        for d in range(4): A(f"v_and_b32 v{48+4*k+d}, v{44+k}, v{8+d}")
    A(f"s_waitcnt vmcnt({11-n3})")
    for k in range(4): A(f"v_mfma_f32_16x16x32_bf16 v[16:19], v[{48+4*k}:{51+4*k}], v[{WD+4*k}:{WD+4*k+3}], {'0' if k==0 else 'v[16:19]'}")
    A("s_waitcnt lgkmcnt(0)")
    for k in range(4): A(f"v_mul_f32 v{16+k}, v{16+k}, v23")
    A("L_o_wait:")
    A("s_waitcnt lgkmcnt(0)\ns_mov_b32 s9, 0")
    M=36; CK=37; R=40; W=120; SB=24
    tg=["s42","s51","s52","s53"]
    def chk(r,k,first=False):
        if first: A(f"v_xor_b32 v{CK}, {tg[k]}, v{r+k}")
        else: A(f"v_bitop3_b32 v{CK}, v{CK}, v{r+k}, {tg[k]} bitop3:0xf6")
    X=SA; Y=SA+4; ML=SA+8; WM=38; LL=39; AB=144
    A(f"s_waitcnt vmcnt({8-n1})")
    stamp(12)
    A("s_branch L_o_in")
    A("L_o_first:")
    if bsleep: A(f"s_cmp_lg_u32 s9, 0\ns_cbranch_scc1 L_o_loop\ns_sleep {bsleep}")
    A("L_o_loop:")
    oiss(SA)
    A(f"s_add_u32 s9, s9, 1\ns_cmp_ge_u32 s9, {spin}\ns_cbranch_scc1 L_o_bail")
    A("s_waitcnt vmcnt(2)")
    A("L_o_in:")
    A(f"v_max_f32_dpp v{M}, v{ML}, v{ML} {X1}{DPP}")
    chk(ML,0,True); chk(ML,1)
    A(f"v_max_f32_dpp v{M}, v{M}, v{M} {X2}{DPP}")
    chk(ML,2); chk(ML,3)
    A(f"v_max_f32_dpp v{M}, v{M}, v{M} {HM}{DPP}")
    A(f"v_cmp_ne_u32_sdwa vcc, v{CK}, v21 src0_sel:BYTE_0 src1_sel:BYTE_0")
    A(f"v_sub_f32 v{M}, v{ML}, v{M}\nv_exp_f32 v{M}, v{M}")
    A("s_cbranch_vccnz L_o_first")
    stamp(11)
    A(f"v_mul_f32 v{LL}, v{ML+1}, v{M}")
    A(f"v_mov_b32_dpp v{WM}, v{M} {HM}{DPP}")
    A("s_cmp_eq_u32 s9, 0\ns_cbranch_scc1 L_o_nw\ns_waitcnt vmcnt(0)\nL_o_nw:")
    for k in range(4): A(f"v_mul_f32 v{R+k}, v{X+k}, v{M}")
    for k in range(4): A(f"v_fmac_f32_dpp v{R+k}, v{Y+k}, v{WM} {HM}{DPP}")
    for m in (X1,X2):
        for k in range(4): A(f"v_add_f32_dpp v{R+k}, v{R+k}, v{R+k} {m}{DPP}")
    for k in range(4): A(f"v_cvt_pk_bf16_f32 v{R+k}, v{R+k}, v{R+k}")
    def omfma(j):
        if j==n1: A("s_waitcnt vmcnt(0)")
        A(f"v_mfma_f32_16x16x32_bf16 v[12:15], v[{AB+4*j}:{AB+4*j+3}], v[{WO+4*j}:{WO+4*j+3}], {'0' if j==0 else 'v[12:15]'}")
    for k in range(8):
        abuild(AB+4*k, R+(k&3), k<4)
        if k>=1: omfma(k-1)
    A(f"v_add_f32_dpp v{LL}, v{LL}, v{LL} {X1}{DPP}")
    omfma(7)
    chk(X,0); chk(X,1)
    A(f"v_add_f32_dpp v{LL}, v{LL}, v{LL} {X2}{DPP}")
    chk(X,2); chk(X,3)
    A(f"v_add_f32_dpp v{LL}, v{LL}, v{LL} {HM}{DPP}")
    chk(Y,0)
    A(f"v_rcp_f32 v{LL}, v{LL}")
    chk(Y,1); chk(Y,2); chk(Y,3)
    A(f"v_mul_f32 v{LL}, v22, v{LL}")
    A(f"v_cmp_ne_u32_sdwa vcc, v{CK}, v21 src0_sel:BYTE_0 src1_sel:BYTE_0")
    stamp(13)
    for k in range(4): A(f"v_fma_f32 v{12+k}, v{12+k}, v{LL}, v{16+k}")
    A("s_cbranch_vccnz L_o_loop")
    A("L_o_bail:")
    if stamps: A("s_lshl_b32 s9, s9, 8\ns_add_u32 s43, s43, s9")
    fold(12,16)
    A("global_store_dwordx4 v6, v[12:15], s[40:41] sc1")
    stamp(9)
    if stamps: A("s_branch L_x3")
    A("s_endpgm")
    A("L_p_exit:")
    A("s_cmp_lg_u32 s3, 4\ns_cbranch_scc1 L_x1")
    G0=30
    A(f"s_cmp_lt_u32 s4, 24\ns_cbranch_scc1 L_g3\ns_waitcnt vmcnt(0)\nL_g3:\nv_mov_b32 v{G0}, 0\ns_mov_b32 s8, 0xffff0000")
    for k in range(5):
        a,b,c,d=G0+2,G0+3,G0+4,G0+5
        A(f"""v_lshlrev_b32 v{a}, 16, v{GX+k}
        v_and_b32 v{b}, s8, v{GX+k}
        v_lshlrev_b32 v{c}, 16, v{GX+6+k}
        v_and_b32 v{d}, s8, v{GX+6+k}
        v_pk_mul_f32 v[{a}:{b}], v[{a}:{b}], v[{c}:{d}]
        v_cvt_pk_bf16_f32 v{a}, v{a}, v{b}
        v_lshlrev_b32 v{b}, 16, v{a}
        v_and_b32 v{a}, s8, v{a}
        v_add_f32 v{G0}, v{G0}, v{b}
        v_add_f32 v{G0}, v{G0}, v{a}""")
    allred8("v_add_f32",[G0]); allred_oct("v_add_f32",G0,G0+1)
    bf16r(G0)
    A(f"""v_mul_f32 v{G0}, {hex(f2u(-math.log2(math.e)))}, v{G0}
    v_exp_f32 v{G0}, v{G0}
    v_add_f32 v{G0}, 1.0, v{G0}
    v_rcp_f32 v{G0}, v{G0}""")
    bf16r(G0)
    A(f"v_sub_f32 v{G0+1}, 1.0, v{G0}")
    bf16r(G0+1)
    A(f"ds_write_b64 v21, v[{G0}:{G0+1}] offset:{L_GATE}\ns_waitcnt lgkmcnt(0)\ns_barrier\ns_branch L_pubdone")
    A("L_x1:\ns_barrier")
    if stamps: A("s_branch L_x2")
    A("s_endpgm")
    A(";NEWBLOCK")
    A("L_kv2:")
    stamp(4)
    poll2("q",PA,PB if pb<17 else None,S+4,after('PA1'),after('PB1') if pb<17 else 0,qissue)
    stamp(5)
    vload()
    red8regs(PA,S)
    A(f"""v_cvt_pk_bf16_f32 v{S}, v{S}, v{S}
    ds_write_b16 v177, v{S} offset:{L_QB}
    ds_read_b128 v[12:15], v178 offset:{L_QB}
    s_waitcnt lgkmcnt(0)""")
    vload()
    for oc in range(16): A(f"v_dot2_f32_bf16 v{S+oc}, v{K0+4*oc}, v12, 0")
    for d in range(1,4):
        for oc in range(16): A(f"v_dot2c_f32_bf16 v{S+oc}, v{K0+4*oc+d}, v{12+d}")
        if d!=2: vload()
    T=PA
    for k in range(8): A(f"v_add_f32_dpp v{T+k}, v{S+k}, v{S+k} {HM} row_mask:0xf bank_mask:0x5")
    for k in range(8): A(f"v_add_f32_dpp v{T+k}, v{S+8+k}, v{S+8+k} {HM} row_mask:0xf bank_mask:0xa")
    for m in (X1,X2):
        for k in range(8): A(f"v_add_f32_dpp v{T+k}, v{T+k}, v{T+k} {m}{DPP}")
    A(f"""s_mov_b32 exec_lo, 0x11111111
    s_mov_b32 exec_hi, 0x11111111
    ds_write_b128 v179, v[{T}:{T+3}]
    ds_write_b128 v179, v[{T+4}:{T+7}] offset:16
    s_mov_b64 exec, 1
    ds_add_u32 v183, v184 offset:{L_CNT}
    s_mov_b64 exec, -1""")
    stamp(6)
    vload()
    A("L_sc:")
    A(f"""ds_read_b32 v16, v183 offset:{L_CNT}
    ds_read_b64 v[18:19], v180
    ds_read_b64 v[20:21], v180 offset:512
    ds_read_b64 v[22:23], v180 offset:1024
    s_waitcnt lgkmcnt(3)
    v_readfirstlane_b32 s8, v16
    s_cmp_lt_u32 s8, 3
    s_waitcnt lgkmcnt(0)
    s_cbranch_scc1 L_sc""")
    stamp(7)
    vload()
    A(f"""v_add_f32 v18, v18, v20
    v_add_f32 v19, v19, v21
    v_add_f32 v18, v18, v22
    v_add_f32 v19, v19, v23
    v_cvt_pk_bf16_f32 v18, v18, v19
    v_and_b32 v19, 0xffff0000, v18
    v_lshlrev_b32 v18, 16, v18
    v_mul_f32 v18, {hex(SCALE)}, v18
    v_mul_f32 v19, {hex(SCALE)}, v19
    v_cvt_pk_bf16_f32 v18, v18, v19
    v_and_b32 v19, 0xffff0000, v18
    v_lshlrev_b32 v18, 16, v18
    v_mul_f32 v18, {hex(LOG2E)}, v18
    v_mul_f32 v19, {hex(LOG2E)}, v19
    v_max_f32 v188, v18, v19""")
    allred8("v_max_f32",[188]); allred_oct("v_max_f32",188,20)
    vload()
    embed(188,ks=[0])
    A(f"""v_sub_f32 v18, v18, v188
    v_sub_f32 v19, v19, v188
    v_exp_f32 v18, v18
    v_exp_f32 v19, v19
    v_cvt_pk_bf16_f32 v20, v18, v18
    v_cvt_pk_bf16_f32 v21, v19, v19
    ds_write_b64 v181, v[20:21] offset:{L_PD}""")
    for j in range(4): A(f"ds_read_b128 v[{S+4*j}:{S+4*j+3}], v182 offset:{L_PD+16*j}")
    A("v_add_f32 v189, v18, v19")
    allred8("v_add_f32",[189]); allred_oct("v_add_f32",189,20)
    while vnext[0]<16: vload(); A("s_nop 0")
    stamp(3)
    A("s_barrier")
    embed(188,ks=[1,2,3])
    A("s_waitcnt lgkmcnt(0)")
    stamp(8)
    for oc in range(17):
        if oc<16:
            for d in range(4): A(f"v_and_b32 v{K0+4*oc+d}, v{S+oc}, v{8+d}")
        if 1<=oc<=8:
            k=oc-1; n=after('V%d'%k)
            if n<after('PA1'): A(f"s_waitcnt vmcnt({n})")
            A(f"v_mfma_f32_16x16x32_bf16 v[12:15], v[{K0+4*k}:{K0+4*k+3}], v[{V0+4*k}:{V0+4*k+3}], {'0' if k==0 else 'v[12:15]'}")
    for k in range(8,16):
        n=after('V%d'%k)
        if n<after('PA1'): A(f"s_waitcnt vmcnt({n})")
        A(f"v_mfma_f32_16x16x32_bf16 v[12:15], v[{K0+4*k}:{K0+4*k+3}], v[{V0+4*k}:{V0+4*k+3}], v[12:15]")
    stamp(9)
    MLX="0xff" if mlrep else "1"
    fold(12,PA)
    if fast:
        A("s_cmp_lg_u64 s[48:49], 0\ns_cbranch_scc1 L_slowpub")
        A(f"global_store_dwordx4 v6, v[12:15], s[40:41]\ns_mov_b64 exec, {MLX}\nglobal_store_dwordx4 v7, v[188:191], s[40:41] offset:2048")
    else:
        A(f"global_store_dwordx4 v6, v[12:15], s[40:41] sc1\ns_mov_b64 exec, {MLX}\nglobal_store_dwordx4 v7, v[188:191], s[40:41] offset:2048 sc1")
    A("L_pubdone:")
    stamp(10)
    A("s_barrier")
    if stamps: A("s_waitcnt vmcnt(0)"); stamp(15)
    A(f"""s_cmp_lt_u32 s4, 24
    s_cbranch_scc1 L_x3
    s_lshr_b32 s10, s5, 1
    s_lshl3_add_u32 s8, s10, s4
    s_sub_u32 s8, s8, 24
    s_cmp_ge_u32 s8, 10
    s_cbranch_scc1 L_x3
    s_mov_b64 exec, -1
    s_and_b32 s11, s5, 1
    s_sub_u32 s12, s3, 4
    s_lshl_b32 s10, s8, 15
    s_mul_i32 s13, s12, 6144
    s_add_u32 s10, s10, s13
    s_lshl_b32 s13, s11, 7
    s_add_u32 s10, s10, s13
    s_add_u32 s10, s10, {F_BASE+2048}
    v_lshl_add_u32 v19, v1, 8, v3
    v_add_u32 v19, s10, v19
    s_lshl_b32 s15, s8, 7
    s_lshl3_add_u32 s15, s11, s15
    v_bfe_u32 v20, v0, 4, 1
    v_and_b32 v21, 1, v1
    v_lshl_add_u32 v20, v21, 1, v20
    v_lshl_add_u32 v21, v2, 2, v20
    v_lshlrev_b32 v21, 4, v21
    s_lshl_b32 s12, s12, 2
    v_add_u32 v22, s12, v21
    v_lshl_add_u32 v20, v20, 1, v3
    v_add_u32 v20, s15, v20
    v_mov_b32 v16, 0
    v_mov_b32 v17, 1
    v_mov_b32 v24, 0
    v_mov_b32 v25, 0
    v_mov_b32 v26, 0
    v_mov_b32 v27, 0
    s_mov_b64 s[6:7], -1
    s_mov_b64 s[8:9], -1
    s_mov_b64 s[10:11], -1
    s_barrier""")
    stamp(11)
    MK=["s[6:7]","s[8:9]","s[10:11]"]
    if outpre: A("global_load_ushort v30, v20, s[36:37] sc1")
    def fiss(d):
        for i in range(3):
            r=32+4*(3*d+i)
            A(f"s_or_b64 exec, {MK[i]}, 1\nglobal_load_dwordx4 v[{r}:{r+3}], v19, s[40:41] offset:{2048*(i-1)} sc1")
    A(";NOPAD{")
    for d in range(fdepth-1):
        fiss(d)
        A("s_sleep 2")
    A("L_f_loop:")
    for d in range(fdepth):
        fiss((d+fdepth-1)%fdepth)
        A(f"s_add_u32 s43, s43, 0x10000\ns_waitcnt vmcnt({3*(fdepth-1)})")
        for i in range(3):
            r=32+4*(3*d+i)
            A(f"s_mov_b64 exec, {MK[i]}\ns_cbranch_execz L_h{d}_{i}")
            cmpx(r)
            A(f"v_pk_add_f32 v[24:25], v[24:25], v[{r}:{r+1}]\nv_pk_add_f32 v[26:27], v[26:27], v[{r+2}:{r+3}]")
            A(f"s_andn2_b64 {MK[i]}, {MK[i]}, exec\nL_h{d}_{i}:")
        A(f"s_or_b64 s[54:55], {MK[0]}, {MK[1]}\ns_or_b64 s[54:55], s[54:55], {MK[2]}\ns_cbranch_scc0 L_f_ok")
        if fgap: A(f"s_sleep {fgap}")
    A(f"""s_cmp_lt_u32 s43, 0xf0000000
    s_cbranch_scc1 L_f_loop
    L_f_ok:
    s_mov_b64 exec, -1""")
    A(";NOPAD}")
    stamp(13)
    for k in range(2): A(f"v_add_f32_dpp v{28+k}, v{24+k}, v{24+k} row_ror:8 row_mask:0xf bank_mask:0x3")
    for k in range(2): A(f"v_add_f32_dpp v{28+k}, v{26+k}, v{26+k} row_ror:8 row_mask:0xf bank_mask:0xc")
    A(f"""v_permlane16_swap_b32 v28, v29
    v_add_f32 v28, v28, v29
    v_mov_b32 v29, v28
    v_permlane32_swap_b32 v28, v29
    v_add_f32 v28, v28, v29
    ds_write_b32 v22, v28
    s_mov_b64 exec, 1
    ds_add_rtn_u32 v18, v16, v17 offset:{L_CNT+4}
    s_mov_b64 exec, -1
    ds_read_b128 v[24:27], v21
    s_mov_b32 exec_hi, 0
    s_waitcnt lgkmcnt(0)
    v_readfirstlane_b32 s8, v18
    v_add_f32 v24, v24, v25
    v_add_f32 v26, v26, v27
    s_cmp_lg_u32 s8, 3
    s_cbranch_scc1 L_fin
    v_add_f32 v24, v24, v26
    v_cvt_pk_bf16_f32 v24, v24, v24
    global_store_short v20, v24, s[36:37]
    s_cmp_lg_u32 s15, 0
    s_cbranch_scc1 L_fin
    s_mov_b64 exec, 1
    v_mov_b32 v26, s42
    global_store_dword v20, v26, s[40:41]""")
    if stamps: A("s_branch L_fin\nL_x2:\ns_barrier\nL_x3:\ns_barrier")
    else: A("L_x3:")
    A("L_fin:")
    stamp(14)
    if stamps:
        A("s_mov_b64 exec, -1")
        A("s_waitcnt lgkmcnt(0)")
        if probe is not None:
            lo,hi,st,sign,wgsel=probe
            A("v_mov_b32 v251, 0\ns_or_b32 s98, s2, s3\ns_cbranch_scc1 L_dbgd\nv_mov_b32 v250, s60\nglobal_store_dword v251, v250, s[38:39] sc1\nL_dbgd:")
            A(f"s_cmp_lt_u32 s3, {lo}\ns_cbranch_scc1 L_end\ns_cmp_gt_u32 s3, {hi}\ns_cbranch_scc1 L_end")
            if wgsel is not None: A(f"s_cmp_lg_u32 s2, {wgsel}\ns_cbranch_scc1 L_end")
            A(f"L_dbgw:\ns_sleep 32\ns_memrealtime s[96:97]\ns_waitcnt lgkmcnt(0)\ns_sub_u32 s96, s96, s60\ns_cmp_lt_u32 s96, 3500\ns_cbranch_scc1 L_dbgw")
            A("global_load_dword v250, v251, s[38:39] sc1\ns_waitcnt vmcnt(0)\nv_readfirstlane_b32 s95, v250")
            A(f"s_sub_u32 s94, s{60+2*st}, s95\ns_mul_i32 s94, s94, {10*sign}\ns_add_u32 s94, s94, {6000 if sign>=0 else 30000}")
            A(f"s_min_u32 s94, s94, 50000")
            A(f"L_dbgx:\ns_sleep 2\ns_memrealtime s[96:97]\ns_waitcnt lgkmcnt(0)\ns_sub_u32 s96, s96, s95\ns_cmp_lt_u32 s96, s94\ns_cbranch_scc1 L_dbgx")
        else:
            A("L_dbgw:\ns_sleep 32\ns_memrealtime s[96:97]\ns_waitcnt lgkmcnt(0)\ns_sub_u32 s96, s96, s60\ns_cmp_lt_u32 s96, 1500\ns_cbranch_scc1 L_dbgw")
            for i in range(16): A(f"v_writelane_b32 v250, s{60+2*i}, {i}")
            A("v_writelane_b32 v250, s46, 16")
            A("v_writelane_b32 v250, s43, 17")
            A("s_getreg_b32 s98, hwreg(HW_REG_HW_ID)")
            A("v_writelane_b32 v250, s98, 18")
            A("s_lshl_b32 s98, s2, 3\ns_add_u32 s98, s98, s3\ns_lshl_b32 s98, s98, 8")
            A(f"s_add_u32 s98, s98, {STAMP_BASE}")
            A("v_lshl_add_u32 v251, v0, 2, s98")
            A("global_store_dword v251, v250, s[40:41]")
    A("L_end:")
    A("s_endpgm")
    if fast:
        A("L_slowpub:")
        A(f"global_store_dwordx4 v6, v[12:15], s[40:41] sc1\ns_mov_b64 exec, {MLX}\nglobal_store_dwordx4 v7, v[188:191], s[40:41] offset:2048 sc1\ns_branch L_pubdone")
    L=A.L
    def drop(pred, repl=None):
        for i,l in enumerate(L):
            if pred(l): L[i]= repl if repl else "    s_nop 0"
    if 'p' in skip: drop(lambda l: "global_store_dwordx4 v6, v[12:15], s[40:41]" in l and L.index(l)<L.index("L_p_done:") and False)
    if 'p' in skip:
        i=[k for k,l in enumerate(L) if l.strip()=="global_store_dwordx4 v6, v[12:15], s[40:41]"][0]; L[i]="    s_nop 0"
    if 'q' in skip or 'p' in skip:
        for nm in ("q","gu"): drop(lambda l: l.strip()==f"s_cbranch_scc1 L_{nm}_ok", f"    s_branch L_{nm}_loc")
        drop(lambda l: "s_cbranch_scc1 L_slowpub" in l)
    if 'g' in skip:
        drop(lambda l: l.strip()=="s_cbranch_scc1 L_nogu", "    s_branch L_nogu"); drop(lambda l: l.strip()=="s_cbranch_scc1 L_o_wait", "    s_branch L_o_wait")
    if 'o' in skip:
        drop(lambda l: "s_cbranch_vccnz" in l)
        idx=[k for k,l in enumerate(L) if l.strip() in ("global_store_dwordx4 v6, v[12:15], s[40:41]","global_store_dwordx4 v6, v[188:191], s[40:41] offset:2048") and k>L.index("L_kv2:")]
        for k in idx: L[k]="    s_nop 0"
    if 'f' in skip:
        drop(lambda l: l.strip()=="global_store_dwordx4 v6, v[12:15], s[40:41] sc1")
    if 'f' in skip or 'r' in skip:
        i=L.index("L_f_loop:"); L[i+1]="    s_branch L_f_ok"
    body,n=pad(A.L)
    if warm:
        body,pads=place_pads(body, entry_off=0, verbose=verbose, target=lambda k,N: "L_back" if k<3 else "L_back2")
        assert len(pads)<=8
        i=body.index("L_back2:")
        for k in range(len(pads),8): body.insert(i, f"L_t{k}:")
    nv = 256 if stamps else 200
    hdr=open(f"cdna_kernels/{NAME}.s.ref").read().split("; Override launch")[0] if header else ""
    txt=hdr+f"""; @launch grid=(256,1,1) block=(512,1,1) lds={LDS}
.amdgcn_target "amdgcn-amd-amdhsa--gfx950"
.text
.globl {kname}
.p2align 12
.fill 832, 4, 0xbf800000
.p2align 8
.type {kname},@function
"""+"\n".join(body)+f"""
.section .rodata,"a"
.p2align 6
.amdhsa_kernel {kname}
  .amdhsa_next_free_vgpr {nv}
  .amdhsa_next_free_sgpr 102
  .amdhsa_accum_offset {nv}
  .amdhsa_group_segment_fixed_size 0
  .amdhsa_kernarg_size 104
  .amdhsa_user_sgpr_count 2
  .amdhsa_user_sgpr_kernarg_segment_ptr 1
  .amdhsa_system_sgpr_workgroup_id_x 1
  .amdhsa_float_denorm_mode_32 3
.end_amdhsa_kernel
"""
    open(path,"w").write(txt)
    return n
if __name__=="__main__":
    from build import build
    p=f"h11.s"
    print("nops:",gen(p, verbose=True))
    print(build(p, NAME+"_kernel"))
```

```python
import sys, struct, math
sys.path.insert(0,"gen"); sys.path.insert(0,"exp")
from asmlib import Asm, pad, place_pads
NAME="gated_mix__sliding_block_cached__glu_gated_geglu__decode"
def f2u(x): return struct.unpack("<I", struct.pack("<f", x))[0]
LOG2E=f2u(math.log2(math.e)); SCALE=f2u(192**-0.5)
QG_BASE=0x1000; O_BASE=0x52000; F_BASE=0xA0000; STAMP_BASE=0x100000; FLAG=0x800
DPP=" row_mask:0xf bank_mask:0xf"
X1="quad_perm:[1,0,3,2]"; X2="quad_perm:[2,3,0,1]"; HM="row_half_mirror"
L_SC=0; L_GATE=1536; L_CNT=1544; L_QB=1600; L_PD=2048; L_HD=3584
LDS=3584+1024

def gen(path, kname=NAME+"_kernel", nt=True, stamps=False, pa=3, pb=6, cap=10, nv0=9, n1=3, n3=0, bsleep=4, mlrep=True, b1at=15, dbl=0, rs=256, ofl='', afl='sc0 sc1', wdearly=False, gdelay=False, spin=1<<16, warm=True, header=True,
        olsleep=0, fback=3, fthr=24, gupos=0, probe=None, fast=True, pretouch=True, verbose=False, outpre=False, osets=2, skip='', fdepth=3, fgap=0):
    A=Asm()
    NT=" nt" if nt else ""
    def stamp(i):
        if stamps: A(f"s_memrealtime s[{60+2*i}:{61+2*i}]")
    masks="""v_mov_b32 v12, 0xffff
        v_mov_b32 v13, 0
        v_lshlrev_b64 v[12:13], v3, v[12:13]
        v_cmp_gt_u32 vcc, 4, v2
        s_nop 1
        v_cndmask_b32 v8, 0, v12, vcc
        v_cndmask_b32 v9, 0, v13, vcc
        v_cndmask_b32 v10, v12, 0, vcc
        v_cndmask_b32 v11, v13, 0, vcc"""
    def embed(r, tag="s42", ks=range(4)):
        for k in ks: A(f"v_mov_b32_sdwa v{r+k}, {tag} dst_sel:BYTE_0 dst_unused:UNUSED_PRESERVE src0_sel:BYTE_{k}")
    def fold(acc,tmp,tag="s42"):
        for k in range(4): A(f"v_permlane32_swap_b32 v{acc+k}, v{tmp+k}")
        for k in range(4): A(f"v_add_f32_dpp v{acc+k}, v{tmp+k}, v{acc+k} row_ror:8{DPP}")
        embed(acc,tag)
        A("s_mov_b64 exec, 0x00ff00ff")
    def cmpx(r,n=4):
        for k in range(n): A(f"v_cmpx_eq_u32_sdwa vcc, v{r+k}, s42 src0_sel:BYTE_0 src1_sel:BYTE_{k}")
    def checkq(r, t):
        A(f"v_xor_b32_sdwa v{t}, v{r+3}, s42 dst_sel:DWORD dst_unused:UNUSED_PAD src0_sel:BYTE_0 src1_sel:BYTE_3")
        A(f"v_xor_b32_sdwa v{t+1}, v{r+7}, s42 dst_sel:DWORD dst_unused:UNUSED_PAD src0_sel:BYTE_0 src1_sel:BYTE_3")
        A(";NOPAD{")
        cmpx(r,3); cmpx(r+4,3)
        A(f"v_cmpx_gt_u32 vcc, 8, v{t}\nv_cmpx_gt_u32 vcc, 8, v{t+1}")
        A("s_cmp_eq_u64 exec, -1\ns_mov_b64 exec, -1\n;NOPAD}")
    def poll2(name, PA, PB, t, wa, wb, reissue):
        A(f"s_waitcnt vmcnt({wa})")
        if PB is not None:
            checkq(PA,t)
            A(f"s_cbranch_scc1 L_{name}_ok")
            A(f"s_add_u32 s43, s43, 1\ns_waitcnt vmcnt({wb})")
            for k in range(4): A(f"v_mov_b64 v[{PA+2*k}:{PA+2*k+1}], v[{PB+2*k}:{PB+2*k+1}]")
        A(f"L_{name}_chk:")
        checkq(PA,t)
        A(f"s_cbranch_scc1 L_{name}_ok")
        reissue(PA)
        A(f"s_and_b32 s8, s43, 3\ns_cmp_lg_u32 s8, 3\ns_cbranch_scc1 L_{name}_nowb\nbuffer_wbl2 sc1\nL_{name}_nowb:")
        A(f"s_add_u32 s43, s43, 1\ns_cmp_lt_u32 s43, {spin}\ns_waitcnt vmcnt(0)\ns_cbranch_scc1 L_{name}_chk")
        A(f"L_{name}_ok:")
        A(f"v_cmp_ne_u32 s[48:49], s46, v{t}")
        A(f"s_cmp_eq_u64 s[48:49], 0\ns_cbranch_scc1 L_{name}_loc\nbuffer_wbl2 sc1\nL_{name}_loc:")
    def bf16r(r):
        A(f"v_cvt_pk_bf16_f32 v{r}, v{r}, v{r}\nv_and_b32 v{r}, 0xffff0000, v{r}")
    def allred_oct(op, r, t):
        A(f"{op}_dpp v{r}, v{r}, v{r} row_ror:8{DPP}")
        A(f"v_mov_b32 v{t}, v{r}\nv_permlane16_swap_b32 v{r}, v{t}\n{op} v{r}, v{r}, v{t}")
        A(f"v_mov_b32 v{t}, v{r}\nv_permlane32_swap_b32 v{r}, v{t}\n{op} v{r}, v{r}, v{t}")
    def allred8(op, rs):
        for m in (X1,X2,HM):
            for r in rs: A(f"{op}_dpp v{r}, v{r}, v{r} {m}{DPP}")
    def red8regs(a, b):
        for k in range(4): A(f"v_add_f32_dpp v{b+k}, v{a+k}, v{a+k} row_ror:8 row_mask:0xf bank_mask:0x3")
        for k in range(4): A(f"v_add_f32_dpp v{b+k}, v{a+4+k}, v{a+4+k} row_ror:8 row_mask:0xf bank_mask:0xc")
        A(f"v_permlane16_swap_b32 v{b}, v{b+1}\nv_permlane16_swap_b32 v{b+2}, v{b+3}")
        A(f"v_add_f32 v{b}, v{b}, v{b+1}\nv_add_f32 v{b+2}, v{b+2}, v{b+3}")
        A(f"v_permlane32_swap_b32 v{b}, v{b+2}\nv_add_f32 v{b}, v{b}, v{b+2}")
    def abuild(dst, src, low):
        for d in range(4):
            own = (d<2)==low
            if own: A(f"v_and_b32 v{dst+d}, v{src}, v{8+d}")
            else: A(f"v_and_b32_dpp v{dst+d}, v{src}, v{8+d} {HM}{DPP}")

    def halffold(acc, sc, mid=None):
        A(f"v_permlane32_swap_b32 v{acc}, v{acc+2}\nv_permlane32_swap_b32 v{acc+1}, v{acc+3}")
        if mid: A(mid)
        for k in range(2): A(f"v_fmac_f32_dpp v{70+k}, v{acc+k}, v{sc} quad_perm:[0,1,2,3] row_mask:0xf bank_mask:0x3")
        for k in range(2): A(f"v_fmac_f32_dpp v{70+k}, v{acc+2+k}, v{sc} row_ror:8 row_mask:0xf bank_mask:0x3")
    A(f"{kname}:")
    stamp(0)
    A("""s_cmp_ge_u32 s2, 256
    s_cbranch_scc1 L_end
    s_load_dwordx16 s[16:31], s[0:1], 0
    s_load_dwordx8 s[32:39], s[0:1], 64
    s_load_dwordx2 s[40:41], s[0:1], 96
    v_lshrrev_b32 v1, 6, v0
    v_and_b32 v0, 63, v0
    v_readfirstlane_b32 s3, v1
    s_and_b32 s4, s2, 7
    s_lshr_b32 s5, s2, 6
    s_lshl3_add_u32 s4, s5, s4
    s_bfe_u32 s5, s2, 0x30003
    v_lshrrev_b32 v1, 3, v0
    v_and_b32 v2, 7, v0
    v_lshlrev_b32 v3, 4, v2
    s_mov_b32 s43, 0
    s_getreg_b32 s46, hwreg(HW_REG_XCC_ID, 0, 3)
    s_cmp_ge_u32 s3, 5
    s_cbranch_scc1 L_kv""")
    W0=24; A0=120; WO=72; WD=104; GX=72
    A(f"""s_setprio 1
    s_mul_i32 s7, s4, 3
    s_add_u32 s7, s7, s3
    s_movk_i32 s6, 0x3000
    s_cmp_lt_u32 s3, 3
    s_cselect_b32 s7, s7, s4
    s_cselect_b32 s6, s6, 0xc00
    s_mul_i32 s8, s5, 80
    v_mad_u32_u24 v5, v1, 10, s8
    v_mul_u32_u24 v4, s6, v5
    s_lshl_b32 s7, s7, 7
    v_add3_u32 v4, v4, v3, s7
    v_lshlrev_b32 v5, 1, v5
    s_cmp_ge_u32 s4, 24
    s_cselect_b32 s9, 3, 5
    s_lshl2_add_u32 s12, s5, s3
    s_cmp_eq_u32 s5, 7
    s_subb_u32 s12, s12, 0
    s_mul_i32 s13, s12, 43
    s_lshr_b32 s13, s13, 7
    s_mul_i32 s8, s13, 3
    s_sub_u32 s12, s12, s8
    s_movk_i32 s8, 10240
    v_mad_u32_u24 v22, v1, s8, v3
    s_lshl_b32 s10, s13, 7
    v_add_u32 v22, s10, v22
    s_cmp_lt_u32 s12, 2
    s_cselect_b32 s14, 2, 1
    s_cmp_ge_u32 s4, 24
    s_cselect_b32 s14, 1, s14
    s_cmp_lt_u32 s5, 6
    s_cselect_b32 s8, 4, 3
    s_cmp_ge_u32 s3, s8
    s_cselect_b32 s14, 0, s14
    v_mul_u32_u24 v7, 20, v0
    s_waitcnt lgkmcnt(0)
    s_cmp_lt_u32 s3, 3
    s_cselect_b64 s[26:27], s[22:23], s[28:29]
    s_cmp_lg_u32 s3, 4
    s_cbranch_scc1 L_nog1
    s_mov_b64 s[26:27], s[30:31]
    s_cmp_eq_u32 s2, 192
    s_cbranch_scc1 L_init
    L_initd:
    global_load_dwordx4 v[{GX}:{GX+3}], v7, s[16:17]
    global_load_dword v{GX+4}, v7, s[16:17] offset:16
    global_load_dwordx4 v[{GX+6}:{GX+9}], v7, s[34:35]
    global_load_dword v{GX+10}, v7, s[34:35] offset:16
    L_nog1:
    s_cmp_ge_u32 s3, s9
    s_cbranch_scc1 L_p_iss""")
    A("global_load_dwordx4 v[16:19], v5, s[16:17]")
    A("global_load_dword v20, v5, s[16:17] offset:16")
    if gdelay: A("s_cmp_lt_u32 s3, 3\ns_cbranch_scc1 L_nodel\ns_waitcnt vmcnt(0)\nL_nodel:")
    for oc in range(10):
        A(f"global_load_dwordx4 v[{W0+4*oc}:{W0+4*oc+3}], v4, s[26:27]{NT}")
        if oc<9: A("v_add_u32 v4, s6, v4")
    if wdearly:
        A(f"""s_setprio 0
    s_cmp_lg_u32 s14, 2
    s_cbranch_scc1 L_p_iss
    s_lshl4_add_u32 s8, s4, s12
    s_mul_i32 s8, s8, {4*1280}
    v_add_u32 v4, s8, v22""")
        for k in range(4):
            if k: A("s_nop 0")
            A(f"global_load_dwordx4 v[{WD+4*k}:{WD+4*k+3}], v4, s[32:33] offset:{1280*k}{NT}")
    A("L_p_iss:")
    A("s_setprio 0\ns_load_dword s42, s[40:41], 0\ns_barrier")
    stamp(1)
    A("s_branch L_p")
    A("L_kv:")
    K0=16; V0=80; PA=144; PB=152; S=160
    A("s_sub_u32 s6, s3, 5")
    if warm:
        A(""";NOPAD{
        s_mov_b64 exec, 0
        s_cmp_eq_u32 s6, 1
        s_cbranch_scc1 L_t1
        s_cmp_eq_u32 s6, 2
        s_cbranch_scc1 L_t2
        s_branch L_t0
        L_back:
        s_mov_b64 exec, -1
        ;NOPAD}""")
    A(f"""s_mul_i32 s7, s4, 1572864
    s_mul_i32 s8, s5, 49152
    s_add_u32 s7, s7, s8
    s_lshl_b32 s8, s6, 7
    s_add_u32 s7, s7, s8
    s_add_u32 s7, s7, {3072*384+3072}
    s_movk_i32 s8, 6144
    v_mad_u32_u24 v4, v1, s8, v3
    v_add_u32 v4, s7, v4
    v_mov_b32 v183, 0
    v_mov_b32 v182, 0
    ds_write_b64 v183, v[182:183] offset:{L_CNT}
    s_waitcnt lgkmcnt(0)
    s_load_dword s42, s[40:41], 0""")
    stamp(12)
    A("s_barrier")
    fill=[l.strip() for l in (f"""s_mul_i32 s45, s4, 3
    s_add_u32 s45, s45, s6
    s_mul_i32 s45, s45, 3072
    s_add_u32 s45, s45, {O_BASE}
    s_mul_i32 s8, s5, 384
    s_add_u32 s8, s8, s45
    v_lshl_add_u32 v185, v0, 7, s8
    @PRE
    s_mul_i32 s8, s4, 10240
    s_lshl_b32 s10, s6, 11
    s_add_u32 s8, s8, s10
    s_add_u32 s8, s8, {QG_BASE}
    v_lshl_add_u32 v5, v1, 8, v3
    v_add_u32 v5, s8, v5
    """+masks+f"""
    s_lshl4_add_u32 s8, s5, s45
    v_bfe_u32 v176, v0, 4, 1
    v_lshl_add_u32 v7, v2, 7, s8
    s_lshr_b32 s10, s5, 2
    v_xor_b32 v6, s10, v176
    v_lshl_add_u32 v6, v6, 10, v7
    v_lshrrev_b32 v177, 5, v0
    v_lshl_add_u32 v177, v177, 1, v176
    v_and_b32 v176, 1, v1
    v_lshl_add_u32 v177, v176, 2, v177
    s_lshl_b32 s8, s6, 7
    v_add_u32 v178, s8, v3
    v_lshl_add_u32 v177, v177, 1, v178
    s_lshl_b32 s8, s6, 9
    v_lshrrev_b32 v176, 2, v2
    v_lshlrev_b32 v182, 6, v1
    v_add_u32 v182, s8, v182
    v_lshl_add_u32 v179, v176, 5, v182
    v_lshlrev_b32 v180, 3, v0
    v_add_u32 v181, s8, v180
    v_mov_b32 v184, 1""").split("\n") if l.strip()]
    seq=[]
    def gap():
        if not fill: A("s_nop 0"); return
        for _ in range(2):
            if not fill: break
            l=fill.pop(0)
            if l=="@PRE":
                if pretouch: A("s_mov_b64 exec, 7\nglobal_load_dword v192, v185, s[40:41] sc1\ns_mov_b64 exec, -1"); seq.append("T")
            else: A(l)
    def qissue(r):
        A(f"global_load_dwordx4 v[{r}:{r+3}], v5, s[40:41] sc1\nglobal_load_dwordx4 v[{r+4}:{r+7}], v5, s[40:41] offset:128 sc1")
    def thr(n=1):
        if cap and len(seq)+n>cap: A(f"s_waitcnt vmcnt({cap-n})")
    vnext=[0]
    def vload(throttle=False, again=True):
        oc=vnext[0]
        if oc>=16: return
        if throttle: thr()
        A(f"global_load_dwordx4 v[{V0+4*oc}:{V0+4*oc+3}], v4, s[20:21] offset:{oc*384-3072}{NT}"); seq.append(f"V{oc}"); vnext[0]+=1
        if oc==b1at:
            stamp(3); A("s_barrier")
        if not throttle and again and dbl: vload(False, False)
    def after(n): return len(seq)-1-seq.index(n)
    for oc in range(16):
        thr()
        A(f"global_load_dwordx4 v[{K0+4*oc}:{K0+4*oc+3}], v4, s[18:19] offset:{oc*384-3072}{NT}"); seq.append(f"K{oc}"); gap()
    stamp(1)
    for oc in range(nv0+1):
        if oc==pa: qissue(PA); seq+=["PA0","PA1"]; gap(); stamp(2)
        if oc==pb: qissue(PB); seq+=["PB0","PB1"]; gap()
        if oc<nv0: vload(True); gap()
    while fill: gap()
    A("s_waitcnt lgkmcnt(0)\ns_add_u32 s42, s42, 0x01010101\ns_branch L_kv2")
    A("L_p:")
    if warm:
        A(";NOPAD{\ns_mov_b64 exec, 0")
        for w in range(5): A(f"s_cmp_eq_u32 s3, {w}\ns_cbranch_scc1 L_t{3+w}")
        A("L_back2:\ns_mov_b64 exec, -1\n;NOPAD}")
    A(masks)
    A(f"""v_bfe_u32 v7, v0, 4, 1
    v_lshl_add_u32 v7, v7, 7, v3
    s_waitcnt lgkmcnt(0)
    s_add_u32 s42, s42, 0x01010101
    s_mul_i32 s44, s4, 10240
    s_add_u32 s44, s44, {QG_BASE}
    s_cmp_ge_u32 s3, s9
    s_cbranch_scc1 L_p_done
    s_lshl_b32 s47, s46, 24
    s_xor_b32 s47, s47, s42
    s_lshl3_add_u32 s8, s3, s5
    s_lshl_b32 s8, s8, 8
    s_add_u32 s8, s8, s44
    v_add_u32 v6, s8, v7
    s_mov_b32 s10, 0x01000100
    s_mov_b32 s11, 0x03020302
    s_waitcnt vmcnt(10)""")
    for oc in range(10):
        A(f"v_perm_b32 v21, v{16+oc//2}, v{16+oc//2}, s{10+(oc&1)}")
        for d in range(4): A(f"v_and_b32 v{A0+4*oc+d}, v21, v{8+d}")
    for oc in range(10):
        if wdearly:
            if oc==0: A("s_waitcnt vmcnt(4)")
            if oc==6: A("s_cmp_eq_u32 s14, 2\ns_cbranch_scc1 L_p_go\ns_waitcnt vmcnt(0)\nL_p_go:")
        else: A(f"s_waitcnt vmcnt({9-oc})")
        A(f"v_mfma_f32_16x16x32_bf16 v[12:15], v[{A0+4*oc}:{A0+4*oc+3}], v[{W0+4*oc}:{W0+4*oc+3}], {'0' if oc==0 else 'v[12:15]'}")
    stamp(2)
    fold(12,16,"s47")
    A("global_store_dwordx4 v6, v[12:15], s[40:41]\ns_mov_b64 exec, -1")
    stamp(3)
    A("L_p_done:")
    A("v_mov_b32 v21, 0\ns_cmp_eq_u32 s14, 0\ns_cbranch_scc1 L_p_exit")
    A(f"""s_mul_i32 s15, s4, 3
    s_add_u32 s15, s15, s12
    s_mul_i32 s8, s15, {64*1280}
    s_add_u32 s8, s8, 3840
    v_add_u32 v4, s8, v22
    s_lshl4_add_u32 s8, s4, s12
    s_mul_i32 s8, s8, {4*1280}
    v_add_u32 v66, s8, v22
    s_mul_i32 s8, s15, 3072
    s_add_u32 s8, s8, {O_BASE}
    v_lshl_add_u32 v5, v0, 4, s8
    v_add_u32 v67, s8, v3
    s_mul_i32 s8, s13, {8*rs}
    s_add_u32 s8, s8, {F_BASE}
    v_lshrrev_b32 v65, 4, v0
    v_mul_u32_u24 v6, {rs}, v65
    v_and_b32 v64, 15, v0
    v_lshl_add_u32 v6, v64, 2, v6
    v_add_u32 v6, s8, v6
    v_and_b32 v68, 1, v65
    v_lshl_add_u32 v68, v68, 3, v3
    v_lshrrev_b32 v69, 5, v0
    v_lshl_add_u32 v68, v69, 2, v68
    s_lshl_b32 s8, s13, 7
    v_add_u32 v68, s8, v68
    v_mov_b32 v69, 0x42be0000
    v_and_b32 v70, 1, v1
    v_cvt_f32_u32 v70, v70
    v_mov_b32 v71, v70
    s_mov_b32 s54, 0x00ff00ff
    s_mov_b32 s55, s54
    s_mov_b32 s58, 0x01ff01ff
    s_mov_b32 s59, s58
    s_lshr_b32 s51, s42, 8
    s_lshr_b32 s52, s42, 16
    s_lshr_b32 s53, s42, 24
    s_lshl_b32 s8, s12, 7
    s_add_u32 s8, s8, s44
    s_add_u32 s8, s8, {3*2048}
    v_lshl_add_u32 v20, v1, 8, v3
    v_add_u32 v20, s8, v20
    s_lshl_b32 s8, s3, 8
    v_lshl_add_u32 v64, v64, 4, s8
    v_lshl_add_u32 v64, v65, 2, v64
    v_lshl_add_u32 v65, v1, 4, s8""")
    stamp(4)
    A("s_barrier")
    stamp(5)
    GA=24; T=40
    def guissue(r, fl=" sc1"):
        A(f"global_load_dwordx4 v[{r}:{r+3}], v20, s[40:41]{fl}\nglobal_load_dwordx4 v[{r+4}:{r+7}], v20, s[40:41] offset:2048{fl}")
    A(f"ds_read_b64 v[22:23], v21 offset:{L_GATE}")
    SA=132
    def oiss(r):
        A(f"""global_load_dwordx4 v[{r+8}:{r+11}], v{5 if mlrep else 67}, s[40:41] offset:2048 sc1
        global_load_dwordx4 v[{r}:{r+3}], v5, s[40:41] sc1
        global_load_dwordx4 v[{r+4}:{r+7}], v5, s[40:41] offset:1024 sc1""")
    def woload(k):
        if k==7: A("v_add_u32 v4, 5120, v4")
        else: A("s_nop 0")
        A(f"global_load_dwordx4 v[{WO+4*k}:{WO+4*k+3}], v4, s[24:25] offset:{(1280*k-3840) if k<7 else 0}{NT}")
    A("s_cmp_lg_u32 s14, 2\ns_cbranch_scc1 L_nogu")
    guissue(GA)
    if not wdearly:
        for k in range(4): A(f"s_nop 0\nglobal_load_dwordx4 v[{WD+4*k}:{WD+4*k+3}], v66, s[32:33] offset:{1280*k}{NT}")
    A("L_nogu:")
    for k in range(n1): woload(k)
    stamp(10)
    A("s_barrier")
    stamp(8)
    oiss(SA)
    for k in range(n1,8-n3): woload(k)
    stamp(6)
    A("s_cbranch_scc1 L_o_wait")
    poll2("gu",GA,None,T+4,8-n3+3+(0 if wdearly else 4),0,guissue)
    stamp(7)
    red8regs(GA,T)
    C1=f2u(-2*math.sqrt(2/math.pi)*math.log2(math.e)); C3=f2u(0.044715)
    g=T; t=T+1
    bf16r(g)
    A(f"""v_mul_f32 v{t}, v{g}, v{g}
    v_mul_f32 v{t}, {hex(C3)}, v{t}
    v_fma_f32 v{t}, v{t}, v{g}, v{g}
    v_mul_f32 v{t}, {hex(C1)}, v{t}
    v_exp_f32 v{t}, v{t}
    v_add_f32 v{t}, 1.0, v{t}
    v_rcp_f32 v{t}, v{t}
    v_mul_f32 v{t}, v{g}, v{t}""")
    bf16r(t)
    A(f"""v_mul_f32_dpp v{t}, v{g}, v{t} row_ror:8{DPP}
    v_cvt_pk_bf16_f32 v{t}, v{t}, v{t}
    ds_write_b32 v64, v{t} offset:{L_HD}
    ds_read_b128 v[44:47], v65 offset:{L_HD}
    s_waitcnt lgkmcnt(0)""")
    for k in range(4):
        for d in range(4): A(f"v_and_b32 v{48+4*k+d}, v{44+k}, v{8+d}")
    A(f"s_waitcnt vmcnt({11-n3})")
    for k in range(4): A(f"v_mfma_f32_16x16x32_bf16 v[16:19], v[{48+4*k}:{51+4*k}], v[{WD+4*k}:{WD+4*k+3}], {'0' if k==0 else 'v[16:19]'}")
    A("s_waitcnt lgkmcnt(0)")
    halffold(16,23)
    A("L_o_wait:")
    A("s_waitcnt lgkmcnt(0)\ns_mov_b32 s9, 0")
    M=36; CK=37; R=40; W=120; SB=24
    tg=["s42","s51","s52","s53"]
    def chk(r,k,first=False):
        if first: A(f"v_xor_b32 v{CK}, {tg[k]}, v{r+k}")
        else: A(f"v_bitop3_b32 v{CK}, v{CK}, v{r+k}, {tg[k]} bitop3:0xf6")
    X=SA; Y=SA+4; ML=SA+8; WM=38; LL=39; AB=144
    A(f"s_waitcnt vmcnt({8-n1})")
    stamp(12)
    A("s_branch L_o_in")
    A("L_o_first:")
    if bsleep: A(f"s_cmp_lg_u32 s9, 0\ns_cbranch_scc1 L_o_loop\ns_sleep {bsleep}")
    A("L_o_loop:")
    oiss(SA)
    A(f"s_add_u32 s9, s9, 1\ns_cmp_ge_u32 s9, {spin}\ns_cbranch_scc1 L_o_bail")
    A("s_waitcnt vmcnt(0)")
    A("L_o_in:")
    A(f"v_max_f32_dpp v{M}, v{ML}, v{ML} {X1}{DPP}")
    chk(ML,0,True); chk(ML,1)
    A(f"v_max_f32_dpp v{M}, v{M}, v{M} {X2}{DPP}")
    chk(X,0); chk(Y,0)
    A(f"v_max_f32_dpp v{M}, v{M}, v{M} {HM}{DPP}")
    A(f"v_cmp_ne_u32_sdwa vcc, v{CK}, v21 src0_sel:BYTE_0 src1_sel:BYTE_0")
    A(f"v_sub_f32 v{M}, v{ML}, v{M}\nv_exp_f32 v{M}, v{M}")
    A("s_cbranch_vccnz L_o_first")
    stamp(11)
    A(f"v_mul_f32 v{LL}, v{ML+1}, v{M}")
    A(f"v_mov_b32_dpp v{WM}, v{M} {HM}{DPP}")
    for k in range(4): A(f"v_mul_f32 v{R+k}, v{X+k}, v{M}")
    for k in range(4): A(f"v_fmac_f32_dpp v{R+k}, v{Y+k}, v{WM} {HM}{DPP}")
    for m in (X1,X2):
        for k in range(4): A(f"v_add_f32_dpp v{R+k}, v{R+k}, v{R+k} {m}{DPP}")
    for k in range(4): A(f"v_cvt_pk_bf16_f32 v{R+k}, v{R+k}, v{R+k}")
    def omfma(j):
        if j==n1: A("s_waitcnt vmcnt(0)")
        A(f"v_mfma_f32_16x16x32_bf16 v[12:15], v[{AB+4*j}:{AB+4*j+3}], v[{WO+4*j}:{WO+4*j+3}], {'0' if j==0 else 'v[12:15]'}")
    for k in range(8):
        abuild(AB+4*k, R+(k&3), k<4)
        if k>=1: omfma(k-1)
    A(f"v_add_f32_dpp v{LL}, v{LL}, v{LL} {X1}{DPP}")
    omfma(7)
    chk(ML,2); chk(X,1)
    A(f"v_add_f32_dpp v{LL}, v{LL}, v{LL} {X2}{DPP}")
    chk(X,2); chk(X,3)
    A(f"v_add_f32_dpp v{LL}, v{LL}, v{LL} {HM}{DPP}")
    chk(ML,3)
    A(f"v_rcp_f32 v{LL}, v{LL}")
    chk(Y,1); chk(Y,2); chk(Y,3)
    A(f"v_mul_f32 v{LL}, v22, v{LL}")
    A(f"v_cmp_ne_u32_sdwa vcc, v{CK}, v21 src0_sel:BYTE_0 src1_sel:BYTE_0")
    stamp(13)
    halffold(12,LL,"s_cbranch_vccnz L_o_loop\nL_o_bail:")
    A(f"""s_mov_b64 exec, s[58:59]
    global_atomic_add_f32 v16, v6, v70, s[40:41] {afl}
    global_atomic_add_f32 v17, v6, v71, s[40:41] offset:{4*rs} {afl}""")
    stamp(9)
    if stamps: A("s_lshl_b32 s9, s9, 8\ns_add_u32 s43, s43, s9")
    A(";NOPAD{")
    A(f"""s_waitcnt vmcnt(0)
    v_mov_b32_dpp v18, v16 row_newbcast:8{DPP}
    v_mov_b32_dpp v19, v17 row_newbcast:8{DPP}
    v_add_f32 v16, v16, v70
    v_add_f32 v17, v17, v71
    s_mov_b64 exec, s[54:55]
    v_cmp_eq_f32 s[56:57], v19, v69
    v_cvt_pk_bf16_f32 v16, v16, v17
    v_cmpx_eq_f32 vcc, v18, v69
    s_cbranch_execz L_s0
    global_store_short v68, v16, s[36:37] {ofl}
    L_s0:
    s_mov_b64 exec, s[56:57]
    s_cbranch_execz L_s1
    global_store_short_d16_hi v68, v16, s[36:37] offset:2 {ofl}
    s_cmp_lg_u32 s13, 0
    s_cbranch_scc1 L_s1
    s_and_b64 exec, exec, 1
    s_cbranch_execz L_s1
    v_mov_b32 v17, s42
    global_store_dword v68, v17, s[40:41]
    L_s1:""")
    if stamps: A("s_branch L_fin")
    A("s_endpgm")
    A(";NOPAD}")
    A("L_init:")
    A(f"""v_lshrrev_b32 v60, 2, v0
    v_mul_u32_u24 v60, {rs}, v60
    v_and_b32 v61, 3, v0
    v_lshl_add_u32 v60, v61, 4, v60
    v_add_u32 v60, {F_BASE}, v60
    v_mov_b32 v56, 0
    v_mov_b32 v57, 0
    v_mov_b32 v58, 0
    v_mov_b32 v59, 0""")
    for k in range(5):
        A(f"global_store_dwordx4 v60, v[56:59], s[40:41] sc1")
        if k<4: A(f"v_add_u32 v60, {16*rs}, v60")
    A("s_branch L_initd")
    A("L_p_exit:")
    A("s_cmp_lg_u32 s3, 4\ns_cbranch_scc1 L_x1")
    G0=30
    A(f"s_cmp_lt_u32 s4, 24\ns_cbranch_scc1 L_g3\ns_waitcnt vmcnt(0)\ns_cmp_lg_u32 s2, 192\ns_cbranch_scc1 L_g3\nv_mov_b32 v{G0}, s42\ns_mov_b64 exec, 1\nglobal_store_dword v21, v{G0}, s[40:41] offset:{FLAG} sc1\ns_mov_b64 exec, -1\nL_g3:\nv_mov_b32 v{G0}, 0\ns_mov_b32 s8, 0xffff0000")
    for k in range(5):
        a,b,c,d=G0+2,G0+3,G0+4,G0+5
        A(f"""v_lshlrev_b32 v{a}, 16, v{GX+k}
        v_and_b32 v{b}, s8, v{GX+k}
        v_lshlrev_b32 v{c}, 16, v{GX+6+k}
        v_and_b32 v{d}, s8, v{GX+6+k}
        v_pk_mul_f32 v[{a}:{b}], v[{a}:{b}], v[{c}:{d}]
        v_cvt_pk_bf16_f32 v{a}, v{a}, v{b}
        v_lshlrev_b32 v{b}, 16, v{a}
        v_and_b32 v{a}, s8, v{a}
        v_add_f32 v{G0}, v{G0}, v{b}
        v_add_f32 v{G0}, v{G0}, v{a}""")
    allred8("v_add_f32",[G0]); allred_oct("v_add_f32",G0,G0+1)
    bf16r(G0)
    A(f"""v_mul_f32 v{G0}, {hex(f2u(-math.log2(math.e)))}, v{G0}
    v_exp_f32 v{G0}, v{G0}
    v_add_f32 v{G0}, 1.0, v{G0}
    v_rcp_f32 v{G0}, v{G0}""")
    bf16r(G0)
    A(f"v_sub_f32 v{G0+1}, 1.0, v{G0}")
    bf16r(G0+1)
    A(f"ds_write_b64 v21, v[{G0}:{G0+1}] offset:{L_GATE}\ns_waitcnt lgkmcnt(0)")
    A(f"""s_mov_b64 exec, 1
    s_cmp_lt_u32 s4, 24
    s_cselect_b32 s44, 1, 3
    L_flag:
    global_load_dword v{G0}, v21, s[40:41] offset:{FLAG} sc1
    s_waitcnt vmcnt(0)
    v_cmp_ne_u32 vcc, s42, v{G0}
    s_cbranch_vccz L_flagd
    s_add_u32 s43, s43, 1
    s_cmp_lg_u32 s43, s44
    s_cbranch_scc1 L_flag2
    s_barrier
    L_flag2:
    s_cmp_lt_u32 s43, {spin}
    s_cbranch_scc1 L_flag
    L_flagd:
    s_cmp_ge_u32 s43, s44
    s_cbranch_scc1 L_flag3
    s_barrier
    L_flag3:""")
    stamp(10)
    if stamps: A("s_branch L_x2")
    else: A("s_endpgm")
    A("L_x1:\ns_barrier")
    if stamps: A("s_branch L_x2")
    A("s_endpgm")
    A(";NEWBLOCK")
    A("L_kv2:")
    stamp(4)
    poll2("q",PA,PB if pb<17 else None,S+4,after('PA1'),after('PB1') if pb<17 else 0,qissue)
    stamp(5)
    vload()
    red8regs(PA,S)
    A(f"""v_cvt_pk_bf16_f32 v{S}, v{S}, v{S}
    ds_write_b16 v177, v{S} offset:{L_QB}
    ds_read_b128 v[12:15], v178 offset:{L_QB}
    s_waitcnt lgkmcnt(0)""")
    vload()
    for oc in range(16): A(f"v_dot2_f32_bf16 v{S+oc}, v{K0+4*oc}, v12, 0")
    for d in range(1,4):
        for oc in range(16): A(f"v_dot2c_f32_bf16 v{S+oc}, v{K0+4*oc+d}, v{12+d}")
        if d!=2: vload()
    T=PA
    for k in range(8): A(f"v_add_f32_dpp v{T+k}, v{S+k}, v{S+k} {HM} row_mask:0xf bank_mask:0x5")
    for k in range(8): A(f"v_add_f32_dpp v{T+k}, v{S+8+k}, v{S+8+k} {HM} row_mask:0xf bank_mask:0xa")
    for m in (X1,X2):
        for k in range(8): A(f"v_add_f32_dpp v{T+k}, v{T+k}, v{T+k} {m}{DPP}")
    A(f"""s_mov_b32 exec_lo, 0x11111111
    s_mov_b32 exec_hi, 0x11111111
    ds_write_b128 v179, v[{T}:{T+3}]
    ds_write_b128 v179, v[{T+4}:{T+7}] offset:16
    s_mov_b64 exec, 1
    ds_add_u32 v183, v184 offset:{L_CNT}
    s_mov_b64 exec, -1""")
    stamp(6)
    vload()
    A("L_sc:")
    A(f"""ds_read_b32 v16, v183 offset:{L_CNT}
    ds_read_b64 v[18:19], v180
    ds_read_b64 v[20:21], v180 offset:512
    ds_read_b64 v[22:23], v180 offset:1024
    s_waitcnt lgkmcnt(3)
    v_readfirstlane_b32 s8, v16
    s_cmp_lt_u32 s8, 3
    s_waitcnt lgkmcnt(0)
    s_cbranch_scc1 L_sc""")
    stamp(7)
    vload()
    A(f"""v_add_f32 v18, v18, v20
    v_add_f32 v19, v19, v21
    v_add_f32 v18, v18, v22
    v_add_f32 v19, v19, v23
    v_cvt_pk_bf16_f32 v18, v18, v19
    v_and_b32 v19, 0xffff0000, v18
    v_lshlrev_b32 v18, 16, v18
    v_mul_f32 v18, {hex(SCALE)}, v18
    v_mul_f32 v19, {hex(SCALE)}, v19
    v_cvt_pk_bf16_f32 v18, v18, v19
    v_and_b32 v19, 0xffff0000, v18
    v_lshlrev_b32 v18, 16, v18
    v_mul_f32 v18, {hex(LOG2E)}, v18
    v_mul_f32 v19, {hex(LOG2E)}, v19
    v_max_f32 v188, v18, v19""")
    allred8("v_max_f32",[188]); allred_oct("v_max_f32",188,20)
    vload()
    embed(188,ks=[0])
    A(f"""v_sub_f32 v18, v18, v188
    v_sub_f32 v19, v19, v188
    v_exp_f32 v18, v18
    v_exp_f32 v19, v19
    v_cvt_pk_bf16_f32 v20, v18, v18
    v_cvt_pk_bf16_f32 v21, v19, v19
    ds_write_b64 v181, v[20:21] offset:{L_PD}""")
    for j in range(4): A(f"ds_read_b128 v[{S+4*j}:{S+4*j+3}], v182 offset:{L_PD+16*j}")
    A("v_add_f32 v189, v18, v19")
    allred8("v_add_f32",[189]); allred_oct("v_add_f32",189,20)
    while vnext[0]<16: vload(); A("s_nop 0")
    if b1at>15:
        stamp(3)
        A("s_barrier")
    embed(188,ks=[1,2,3])
    A("s_waitcnt lgkmcnt(0)")
    stamp(8)
    for oc in range(17):
        if oc<16:
            for d in range(4): A(f"v_and_b32 v{K0+4*oc+d}, v{S+oc}, v{8+d}")
        if 1<=oc<=8:
            k=oc-1; n=after('V%d'%k)
            if n<after('PA1'): A(f"s_waitcnt vmcnt({n})")
            A(f"v_mfma_f32_16x16x32_bf16 v[12:15], v[{K0+4*k}:{K0+4*k+3}], v[{V0+4*k}:{V0+4*k+3}], {'0' if k==0 else 'v[12:15]'}")
    for k in range(8,16):
        n=after('V%d'%k)
        if n<after('PA1'): A(f"s_waitcnt vmcnt({n})")
        A(f"v_mfma_f32_16x16x32_bf16 v[12:15], v[{K0+4*k}:{K0+4*k+3}], v[{V0+4*k}:{V0+4*k+3}], v[12:15]")
    stamp(9)
    MLX="0xff" if mlrep else "1"
    fold(12,PA)
    if fast:
        A("s_cmp_lg_u64 s[48:49], 0\ns_cbranch_scc1 L_slowpub")
        A(f"global_store_dwordx4 v6, v[12:15], s[40:41]\ns_mov_b64 exec, {MLX}\nglobal_store_dwordx4 v7, v[188:191], s[40:41] offset:2048")
    else:
        A(f"global_store_dwordx4 v6, v[12:15], s[40:41] sc1\ns_mov_b64 exec, {MLX}\nglobal_store_dwordx4 v7, v[188:191], s[40:41] offset:2048 sc1")
    A("L_pubdone:")
    stamp(10)
    A("s_barrier")
    if stamps: A("s_waitcnt vmcnt(0)"); stamp(15)
    if stamps: A("s_branch L_fin\nL_x2:\ns_barrier")
    A("L_fin:")
    stamp(14)
    if stamps:
        A("s_mov_b64 exec, -1")
        A("s_waitcnt lgkmcnt(0)")
        if probe is not None:
            lo,hi,st,sign,wgsel=probe
            A("v_mov_b32 v251, 0\ns_or_b32 s98, s2, s3\ns_cbranch_scc1 L_dbgd\nv_mov_b32 v250, s60\nglobal_store_dword v251, v250, s[38:39] sc1\nL_dbgd:")
            A(f"s_cmp_lt_u32 s3, {lo}\ns_cbranch_scc1 L_end\ns_cmp_gt_u32 s3, {hi}\ns_cbranch_scc1 L_end")
            if wgsel is not None: A(f"s_cmp_lg_u32 s2, {wgsel}\ns_cbranch_scc1 L_end")
            A(f"L_dbgw:\ns_sleep 32\ns_memrealtime s[96:97]\ns_waitcnt lgkmcnt(0)\ns_sub_u32 s96, s96, s60\ns_cmp_lt_u32 s96, 3500\ns_cbranch_scc1 L_dbgw")
            A("global_load_dword v250, v251, s[38:39] sc1\ns_waitcnt vmcnt(0)\nv_readfirstlane_b32 s95, v250")
            A(f"s_sub_u32 s94, s{60+2*st}, s95\ns_mul_i32 s94, s94, {10*sign}\ns_add_u32 s94, s94, {6000 if sign>=0 else 30000}")
            A(f"s_min_u32 s94, s94, 50000")
            A(f"L_dbgx:\ns_sleep 2\ns_memrealtime s[96:97]\ns_waitcnt lgkmcnt(0)\ns_sub_u32 s96, s96, s95\ns_cmp_lt_u32 s96, s94\ns_cbranch_scc1 L_dbgx")
        else:
            A("L_dbgw:\ns_sleep 32\ns_memrealtime s[96:97]\ns_waitcnt lgkmcnt(0)\ns_sub_u32 s96, s96, s60\ns_cmp_lt_u32 s96, 1500\ns_cbranch_scc1 L_dbgw")
            for i in range(16): A(f"v_writelane_b32 v250, s{60+2*i}, {i}")
            A("v_writelane_b32 v250, s46, 16")
            A("v_writelane_b32 v250, s43, 17")
            A("s_getreg_b32 s98, hwreg(HW_REG_HW_ID)")
            A("v_writelane_b32 v250, s98, 18")
            A("s_lshl_b32 s98, s2, 3\ns_add_u32 s98, s98, s3\ns_lshl_b32 s98, s98, 8")
            A(f"s_add_u32 s98, s98, {STAMP_BASE}")
            A("v_lshl_add_u32 v251, v0, 2, s98")
            A("global_store_dword v251, v250, s[40:41]")
    A("L_end:")
    A("s_endpgm")
    if fast:
        A("L_slowpub:")
        A(f"global_store_dwordx4 v6, v[12:15], s[40:41] sc1\ns_mov_b64 exec, {MLX}\nglobal_store_dwordx4 v7, v[188:191], s[40:41] offset:2048 sc1\ns_branch L_pubdone")
    body,n=pad(A.L)
    if warm:
        body,pads=place_pads(body, entry_off=0, verbose=verbose, target=lambda k,N: "L_back" if k<3 else "L_back2")
        assert len(pads)<=8
        i=body.index("L_back2:")
        for k in range(len(pads),8): body.insert(i, f"L_t{k}:")
    nv = 256 if stamps else 200
    hdr=open(f"cdna_kernels/{NAME}.s.ref").read().split("; Override launch")[0] if header else ""
    txt=hdr+f"""; @launch grid=(256,1,1) block=(512,1,1) lds={LDS}
.amdgcn_target "amdgcn-amd-amdhsa--gfx950"
.text
.globl {kname}
.p2align 12
.fill 832, 4, 0xbf800000
.p2align 8
.type {kname},@function
"""+"\n".join(body)+f"""
.section .rodata,"a"
.p2align 6
.amdhsa_kernel {kname}
  .amdhsa_next_free_vgpr {nv}
  .amdhsa_next_free_sgpr 102
  .amdhsa_accum_offset {nv}
  .amdhsa_group_segment_fixed_size 0
  .amdhsa_kernarg_size 104
  .amdhsa_user_sgpr_count 2
  .amdhsa_user_sgpr_kernarg_segment_ptr 1
  .amdhsa_system_sgpr_workgroup_id_x 1
  .amdhsa_float_denorm_mode_32 3
.end_amdhsa_kernel
"""
    open(path,"w").write(txt)
    return n
if __name__=="__main__":
    from build import build
    p=f"h15.s"
    print("nops:",gen(p, verbose=True))
    print(build(p, NAME+"_kernel"))
```

```python
import sys, struct, math
sys.path.insert(0,"gen"); sys.path.insert(0,"exp")
from asmlib import Asm, pad, place_pads
NAME="gated_mix__sliding_block_cached__glu_gated_geglu__decode"
def f2u(x): return struct.unpack("<I", struct.pack("<f", x))[0]
LOG2E=f2u(math.log2(math.e)); SCALE=f2u(192**-0.5)
QG_BASE=0x1000; O_BASE=0x52000; F_BASE=0xA0000; STAMP_BASE=0x100000; FLAG=0x800
DPP=" row_mask:0xf bank_mask:0xf"
X1="quad_perm:[1,0,3,2]"; X2="quad_perm:[2,3,0,1]"; HM="row_half_mirror"
L_SC=0; L_GATE=1536; L_CNT=1544; L_QB=1600; L_PD=2048; L_HD=3584
LDS=3584+1024

def gen(path, kname=NAME+"_kernel", nt=True, stamps=False, pa=3, pb=6, cap=10, nv0=9, n1=3, n3=0, bsleep=4, mlrep=False, noout=False, b1at=15, dbl=0, rs=256, ofl='', afl='sc0 sc1', wdearly=False, gdelay=False, spin=1<<16, warm=True, header=True,
        olsleep=0, fback=3, fthr=24, gupos=0, probe=None, fast=True, pretouch=True, verbose=False, outpre=False, osets=2, skip='', fdepth=3, fgap=0):
    A=Asm()
    NT=" nt" if nt else ""
    def stamp(i):
        if stamps: A(f"s_memrealtime s[{60+2*i}:{61+2*i}]")
    masks="""v_mov_b32 v12, 0xffff
        v_mov_b32 v13, 0
        v_lshlrev_b64 v[12:13], v3, v[12:13]
        v_cmp_gt_u32 vcc, 4, v2
        s_nop 1
        v_cndmask_b32 v8, 0, v12, vcc
        v_cndmask_b32 v9, 0, v13, vcc
        v_cndmask_b32 v10, v12, 0, vcc
        v_cndmask_b32 v11, v13, 0, vcc"""
    def embed(r, tag="s42", ks=range(4)):
        for k in ks: A(f"v_mov_b32_sdwa v{r+k}, {tag} dst_sel:BYTE_0 dst_unused:UNUSED_PRESERVE src0_sel:BYTE_{k}")
    def fold(acc,tmp,tag="s42"):
        for k in range(4): A(f"v_permlane32_swap_b32 v{acc+k}, v{tmp+k}")
        for k in range(4): A(f"v_add_f32_dpp v{acc+k}, v{tmp+k}, v{acc+k} row_ror:8{DPP}")
        embed(acc,tag)
        A("s_mov_b64 exec, 0x00ff00ff")
    def cmpx(r,n=4):
        for k in range(n): A(f"v_cmpx_eq_u32_sdwa vcc, v{r+k}, s42 src0_sel:BYTE_0 src1_sel:BYTE_{k}")
    def checkq(r, t):
        A(f"v_xor_b32_sdwa v{t}, v{r+3}, s42 dst_sel:DWORD dst_unused:UNUSED_PAD src0_sel:BYTE_0 src1_sel:BYTE_3")
        A(f"v_xor_b32_sdwa v{t+1}, v{r+7}, s42 dst_sel:DWORD dst_unused:UNUSED_PAD src0_sel:BYTE_0 src1_sel:BYTE_3")
        A(";NOPAD{")
        cmpx(r,3); cmpx(r+4,3)
        A(f"v_cmpx_gt_u32 vcc, 8, v{t}\nv_cmpx_gt_u32 vcc, 8, v{t+1}")
        A("s_cmp_eq_u64 exec, -1\ns_mov_b64 exec, -1\n;NOPAD}")
    def poll2(name, PA, PB, t, wa, wb, reissue):
        A(f"s_waitcnt vmcnt({wa})")
        if PB is not None:
            checkq(PA,t)
            A(f"s_cbranch_scc1 L_{name}_ok")
            A(f"s_add_u32 s43, s43, 1\ns_waitcnt vmcnt({wb})")
            for k in range(4): A(f"v_mov_b64 v[{PA+2*k}:{PA+2*k+1}], v[{PB+2*k}:{PB+2*k+1}]")
        A(f"L_{name}_chk:")
        checkq(PA,t)
        A(f"s_cbranch_scc1 L_{name}_ok")
        reissue(PA)
        A(f"s_and_b32 s8, s43, 3\ns_cmp_lg_u32 s8, 3\ns_cbranch_scc1 L_{name}_nowb\nbuffer_wbl2 sc1\nL_{name}_nowb:")
        A(f"s_add_u32 s43, s43, 1\ns_cmp_lt_u32 s43, {spin}\ns_waitcnt vmcnt(0)\ns_cbranch_scc1 L_{name}_chk")
        A(f"L_{name}_ok:")
        A(f"v_cmp_ne_u32 s[48:49], s46, v{t}")
        A(f"s_cmp_eq_u64 s[48:49], 0\ns_cbranch_scc1 L_{name}_loc\nbuffer_wbl2 sc1\nL_{name}_loc:")
    def bf16r(r):
        A(f"v_cvt_pk_bf16_f32 v{r}, v{r}, v{r}\nv_and_b32 v{r}, 0xffff0000, v{r}")
    def allred_oct(op, r, t):
        A(f"{op}_dpp v{r}, v{r}, v{r} row_ror:8{DPP}")
        A(f"v_mov_b32 v{t}, v{r}\nv_permlane16_swap_b32 v{r}, v{t}\n{op} v{r}, v{r}, v{t}")
        A(f"v_mov_b32 v{t}, v{r}\nv_permlane32_swap_b32 v{r}, v{t}\n{op} v{r}, v{r}, v{t}")
    def allred8(op, rs):
        for m in (X1,X2,HM):
            for r in rs: A(f"{op}_dpp v{r}, v{r}, v{r} {m}{DPP}")
    def red8regs(a, b):
        for k in range(4): A(f"v_add_f32_dpp v{b+k}, v{a+k}, v{a+k} row_ror:8 row_mask:0xf bank_mask:0x3")
        for k in range(4): A(f"v_add_f32_dpp v{b+k}, v{a+4+k}, v{a+4+k} row_ror:8 row_mask:0xf bank_mask:0xc")
        A(f"v_permlane16_swap_b32 v{b}, v{b+1}\nv_permlane16_swap_b32 v{b+2}, v{b+3}")
        A(f"v_add_f32 v{b}, v{b}, v{b+1}\nv_add_f32 v{b+2}, v{b+2}, v{b+3}")
        A(f"v_permlane32_swap_b32 v{b}, v{b+2}\nv_add_f32 v{b}, v{b}, v{b+2}")
    def abuild(dst, src, low):
        for d in range(4):
            own = (d<2)==low
            if own: A(f"v_and_b32 v{dst+d}, v{src}, v{8+d}")
            else: A(f"v_and_b32_dpp v{dst+d}, v{src}, v{8+d} {HM}{DPP}")

    def halffold(acc, sc, mid=None):
        A(f"v_permlane32_swap_b32 v{acc}, v{acc+2}\nv_permlane32_swap_b32 v{acc+1}, v{acc+3}")
        if mid: A(mid)
        for k in range(2): A(f"v_fmac_f32_dpp v{70+k}, v{acc+k}, v{sc} quad_perm:[0,1,2,3] row_mask:0xf bank_mask:0x3")
        for k in range(2): A(f"v_fmac_f32_dpp v{70+k}, v{acc+2+k}, v{sc} row_ror:8 row_mask:0xf bank_mask:0x3")
    A(f"{kname}:")
    stamp(0)
    A("""s_cmp_ge_u32 s2, 256
    s_cbranch_scc1 L_end
    s_load_dwordx16 s[16:31], s[0:1], 0
    s_load_dwordx8 s[32:39], s[0:1], 64
    s_load_dwordx2 s[40:41], s[0:1], 96
    v_lshrrev_b32 v1, 6, v0
    v_and_b32 v0, 63, v0
    v_readfirstlane_b32 s3, v1
    s_and_b32 s4, s2, 7
    s_lshr_b32 s5, s2, 6
    s_lshl3_add_u32 s4, s5, s4
    s_bfe_u32 s5, s2, 0x30003
    v_lshrrev_b32 v1, 3, v0
    v_and_b32 v2, 7, v0
    v_lshlrev_b32 v3, 4, v2
    s_mov_b32 s43, 0
    s_getreg_b32 s46, hwreg(HW_REG_XCC_ID, 0, 3)
    s_cmp_ge_u32 s3, 5
    s_cbranch_scc1 L_kv""")
    W0=24; A0=120; WO=72; WD=104; GX=72
    A(f"""s_setprio 1
    s_mul_i32 s7, s4, 3
    s_add_u32 s7, s7, s3
    s_movk_i32 s6, 0x3000
    s_cmp_lt_u32 s3, 3
    s_cselect_b32 s7, s7, s4
    s_cselect_b32 s6, s6, 0xc00
    s_mul_i32 s8, s5, 80
    v_mad_u32_u24 v5, v1, 10, s8
    v_mul_u32_u24 v4, s6, v5
    s_lshl_b32 s7, s7, 7
    v_add3_u32 v4, v4, v3, s7
    v_lshlrev_b32 v5, 1, v5
    s_cmp_ge_u32 s4, 24
    s_cselect_b32 s9, 3, 5
    s_lshl2_add_u32 s12, s5, s3
    s_cmp_eq_u32 s5, 7
    s_subb_u32 s12, s12, 0
    s_mul_i32 s13, s12, 43
    s_lshr_b32 s13, s13, 7
    s_mul_i32 s8, s13, 3
    s_sub_u32 s12, s12, s8
    s_movk_i32 s8, 10240
    v_mad_u32_u24 v22, v1, s8, v3
    s_lshl_b32 s10, s13, 7
    v_add_u32 v22, s10, v22
    s_cmp_lt_u32 s12, 2
    s_cselect_b32 s14, 2, 1
    s_cmp_ge_u32 s4, 24
    s_cselect_b32 s14, 1, s14
    s_cmp_lt_u32 s5, 6
    s_cselect_b32 s8, 4, 3
    s_cmp_ge_u32 s3, s8
    s_cselect_b32 s14, 0, s14
    v_mul_u32_u24 v7, 20, v0
    s_waitcnt lgkmcnt(0)
    s_cmp_lt_u32 s3, 3
    s_cselect_b64 s[26:27], s[22:23], s[28:29]
    s_cmp_lg_u32 s3, 4
    s_cbranch_scc1 L_nog1
    s_mov_b64 s[26:27], s[30:31]
    s_cmp_eq_u32 s2, 192
    s_cbranch_scc1 L_init
    L_initd:
    global_load_dwordx4 v[{GX}:{GX+3}], v7, s[16:17]
    global_load_dword v{GX+4}, v7, s[16:17] offset:16
    global_load_dwordx4 v[{GX+6}:{GX+9}], v7, s[34:35]
    global_load_dword v{GX+10}, v7, s[34:35] offset:16
    L_nog1:
    s_cmp_ge_u32 s3, s9
    s_cbranch_scc1 L_p_iss""")
    A("global_load_dwordx4 v[16:19], v5, s[16:17]")
    A("global_load_dword v20, v5, s[16:17] offset:16")
    if gdelay: A("s_cmp_lt_u32 s3, 3\ns_cbranch_scc1 L_nodel\ns_waitcnt vmcnt(0)\nL_nodel:")
    for oc in range(10):
        A(f"global_load_dwordx4 v[{W0+4*oc}:{W0+4*oc+3}], v4, s[26:27]{NT}")
        if oc<9: A("v_add_u32 v4, s6, v4")
    if wdearly:
        A(f"""s_setprio 0
    s_cmp_lg_u32 s14, 2
    s_cbranch_scc1 L_p_iss
    s_lshl4_add_u32 s8, s4, s12
    s_mul_i32 s8, s8, {4*1280}
    v_add_u32 v4, s8, v22""")
        for k in range(4):
            if k: A("s_nop 0")
            A(f"global_load_dwordx4 v[{WD+4*k}:{WD+4*k+3}], v4, s[32:33] offset:{1280*k}{NT}")
    A("L_p_iss:")
    A("s_setprio 0\ns_load_dword s42, s[40:41], 0\ns_barrier")
    stamp(1)
    A("s_branch L_p")
    A("L_kv:")
    K0=16; V0=80; PA=144; PB=152; S=160
    A("s_sub_u32 s6, s3, 5")
    if warm:
        A(""";NOPAD{
        s_mov_b64 exec, 0
        s_cmp_eq_u32 s6, 1
        s_cbranch_scc1 L_t1
        s_cmp_eq_u32 s6, 2
        s_cbranch_scc1 L_t2
        s_branch L_t0
        L_back:
        s_mov_b64 exec, -1
        ;NOPAD}""")
    A(f"""s_mul_i32 s7, s4, 1572864
    s_mul_i32 s8, s5, 49152
    s_add_u32 s7, s7, s8
    s_lshl_b32 s8, s6, 7
    s_add_u32 s7, s7, s8
    s_add_u32 s7, s7, {3072*384+3072}
    s_movk_i32 s8, 6144
    v_mad_u32_u24 v4, v1, s8, v3
    v_add_u32 v4, s7, v4
    v_mov_b32 v183, 0
    v_mov_b32 v182, 0
    ds_write_b64 v183, v[182:183] offset:{L_CNT}
    s_waitcnt lgkmcnt(0)
    s_load_dword s42, s[40:41], 0""")
    stamp(12)
    A("s_barrier")
    fill=[l.strip() for l in (f"""s_mul_i32 s45, s4, 3
    s_add_u32 s45, s45, s6
    s_mul_i32 s45, s45, 3072
    s_add_u32 s45, s45, {O_BASE}
    s_mul_i32 s8, s5, 384
    s_add_u32 s8, s8, s45
    v_lshl_add_u32 v185, v0, 7, s8
    @PRE
    s_mul_i32 s8, s4, 10240
    s_lshl_b32 s10, s6, 11
    s_add_u32 s8, s8, s10
    s_add_u32 s8, s8, {QG_BASE}
    v_lshl_add_u32 v5, v1, 8, v3
    v_add_u32 v5, s8, v5
    """+masks+f"""
    s_lshl4_add_u32 s8, s5, s45
    v_bfe_u32 v176, v0, 4, 1
    v_lshl_add_u32 v7, v2, 7, s8
    s_lshr_b32 s10, s5, 2
    v_xor_b32 v6, s10, v176
    v_lshl_add_u32 v6, v6, 10, v7
    v_lshrrev_b32 v177, 5, v0
    v_lshl_add_u32 v177, v177, 1, v176
    v_and_b32 v176, 1, v1
    v_lshl_add_u32 v177, v176, 2, v177
    s_lshl_b32 s8, s6, 7
    v_add_u32 v178, s8, v3
    v_lshl_add_u32 v177, v177, 1, v178
    s_lshl_b32 s8, s6, 9
    v_lshrrev_b32 v176, 2, v2
    v_lshlrev_b32 v182, 6, v1
    v_add_u32 v182, s8, v182
    v_lshl_add_u32 v179, v176, 5, v182
    v_lshlrev_b32 v180, 3, v0
    v_add_u32 v181, s8, v180
    v_mov_b32 v184, 1""").split("\n") if l.strip()]
    seq=[]
    def gap():
        if not fill: A("s_nop 0"); return
        for _ in range(2):
            if not fill: break
            l=fill.pop(0)
            if l=="@PRE":
                if pretouch: A("s_mov_b64 exec, 7\nglobal_load_dword v192, v185, s[40:41] sc1\ns_mov_b64 exec, -1"); seq.append("T")
            else: A(l)
    def qissue(r):
        A(f"global_load_dwordx4 v[{r}:{r+3}], v5, s[40:41] sc1\nglobal_load_dwordx4 v[{r+4}:{r+7}], v5, s[40:41] offset:128 sc1")
    def thr(n=1):
        if cap and len(seq)+n>cap: A(f"s_waitcnt vmcnt({cap-n})")
    vnext=[0]
    def vload(throttle=False, again=True):
        oc=vnext[0]
        if oc>=16: return
        if throttle: thr()
        A(f"global_load_dwordx4 v[{V0+4*oc}:{V0+4*oc+3}], v4, s[20:21] offset:{oc*384-3072}{NT}"); seq.append(f"V{oc}"); vnext[0]+=1
        if oc==b1at:
            stamp(3); A("s_barrier")
        if not throttle and again and dbl: vload(False, False)
    def after(n): return len(seq)-1-seq.index(n)
    for oc in range(16):
        thr()
        A(f"global_load_dwordx4 v[{K0+4*oc}:{K0+4*oc+3}], v4, s[18:19] offset:{oc*384-3072}{NT}"); seq.append(f"K{oc}"); gap()
    stamp(1)
    for oc in range(nv0+1):
        if oc==pa: qissue(PA); seq+=["PA0","PA1"]; gap(); stamp(2)
        if oc==pb: qissue(PB); seq+=["PB0","PB1"]; gap()
        if oc<nv0: vload(True); gap()
    while fill: gap()
    A("s_waitcnt lgkmcnt(0)\ns_add_u32 s42, s42, 0x01010101\ns_branch L_kv2")
    A("L_p:")
    if warm:
        A(";NOPAD{\ns_mov_b64 exec, 0")
        for w in range(5): A(f"s_cmp_eq_u32 s3, {w}\ns_cbranch_scc1 L_t{3+w}")
        A("L_back2:\ns_mov_b64 exec, -1\n;NOPAD}")
    A(masks)
    A(f"""v_bfe_u32 v7, v0, 4, 1
    v_lshl_add_u32 v7, v7, 7, v3
    s_waitcnt lgkmcnt(0)
    s_add_u32 s42, s42, 0x01010101
    s_mul_i32 s44, s4, 10240
    s_add_u32 s44, s44, {QG_BASE}
    s_cmp_ge_u32 s3, s9
    s_cbranch_scc1 L_p_done
    s_lshl_b32 s47, s46, 24
    s_xor_b32 s47, s47, s42
    s_lshl3_add_u32 s8, s3, s5
    s_lshl_b32 s8, s8, 8
    s_add_u32 s8, s8, s44
    v_add_u32 v6, s8, v7
    s_mov_b32 s10, 0x01000100
    s_mov_b32 s11, 0x03020302
    s_waitcnt vmcnt(10)""")
    for oc in range(10):
        A(f"v_perm_b32 v21, v{16+oc//2}, v{16+oc//2}, s{10+(oc&1)}")
        for d in range(4): A(f"v_and_b32 v{A0+4*oc+d}, v21, v{8+d}")
    for oc in range(10):
        if wdearly:
            if oc==0: A("s_waitcnt vmcnt(4)")
            if oc==6: A("s_cmp_eq_u32 s14, 2\ns_cbranch_scc1 L_p_go\ns_waitcnt vmcnt(0)\nL_p_go:")
        else: A(f"s_waitcnt vmcnt({9-oc})")
        A(f"v_mfma_f32_16x16x32_bf16 v[12:15], v[{A0+4*oc}:{A0+4*oc+3}], v[{W0+4*oc}:{W0+4*oc+3}], {'0' if oc==0 else 'v[12:15]'}")
    stamp(2)
    fold(12,16,"s47")
    A("global_store_dwordx4 v6, v[12:15], s[40:41]\ns_mov_b64 exec, -1")
    stamp(3)
    A("L_p_done:")
    A("v_mov_b32 v21, 0\ns_cmp_eq_u32 s14, 0\ns_cbranch_scc1 L_p_exit")
    A(f"""s_mul_i32 s15, s4, 3
    s_add_u32 s15, s15, s12
    s_mul_i32 s8, s15, {64*1280}
    s_add_u32 s8, s8, 3840
    v_add_u32 v4, s8, v22
    s_lshl4_add_u32 s8, s4, s12
    s_mul_i32 s8, s8, {4*1280}
    v_add_u32 v66, s8, v22
    s_mul_i32 s8, s15, 3072
    s_add_u32 s8, s8, {O_BASE}
    v_lshl_add_u32 v5, v0, 4, s8
    v_add_u32 v67, s8, v3
    s_mul_i32 s8, s13, {8*rs}
    s_add_u32 s8, s8, {F_BASE}
    v_lshrrev_b32 v65, 4, v0
    v_mul_u32_u24 v6, {rs}, v65
    v_and_b32 v64, 15, v0
    v_lshl_add_u32 v6, v64, 2, v6
    v_add_u32 v6, s8, v6
    v_and_b32 v68, 1, v65
    v_lshl_add_u32 v68, v68, 3, v3
    v_lshrrev_b32 v69, 5, v0
    v_lshl_add_u32 v68, v69, 2, v68
    s_lshl_b32 s8, s13, 7
    v_add_u32 v68, s8, v68
    v_mov_b32 v69, 0x42be0000
    v_and_b32 v70, 1, v1
    v_cvt_f32_u32 v70, v70
    v_mov_b32 v71, v70
    s_mov_b32 s54, 0x00ff00ff
    s_mov_b32 s55, s54
    s_mov_b32 s58, 0x01ff01ff
    s_mov_b32 s59, s58
    s_lshr_b32 s51, s42, 8
    s_lshr_b32 s52, s42, 16
    s_lshr_b32 s53, s42, 24
    s_lshl_b32 s8, s12, 7
    s_add_u32 s8, s8, s44
    s_add_u32 s8, s8, {3*2048}
    v_lshl_add_u32 v20, v1, 8, v3
    v_add_u32 v20, s8, v20
    s_lshl_b32 s8, s3, 8
    v_lshl_add_u32 v64, v64, 4, s8
    v_lshl_add_u32 v64, v65, 2, v64
    v_lshl_add_u32 v65, v1, 4, s8""")
    stamp(4)
    A("s_barrier")
    stamp(5)
    GA=24; T=40
    def guissue(r, fl=" sc1"):
        A(f"global_load_dwordx4 v[{r}:{r+3}], v20, s[40:41]{fl}\nglobal_load_dwordx4 v[{r+4}:{r+7}], v20, s[40:41] offset:2048{fl}")
    A(f"ds_read_b64 v[22:23], v21 offset:{L_GATE}\nglobal_load_dword v39, v21, s[40:41] offset:{FLAG} sc1")
    SA=132
    def oiss(r):
        A(f"""global_load_dwordx4 v[{r+8}:{r+11}], v{5 if mlrep else 67}, s[40:41] offset:2048 sc1
        global_load_dwordx4 v[{r}:{r+3}], v5, s[40:41] sc1
        global_load_dwordx4 v[{r+4}:{r+7}], v5, s[40:41] offset:1024 sc1""")
    def woload(k):
        if k==7: A("v_add_u32 v4, 5120, v4")
        else: A("s_nop 0")
        A(f"global_load_dwordx4 v[{WO+4*k}:{WO+4*k+3}], v4, s[24:25] offset:{(1280*k-3840) if k<7 else 0}{NT}")
    A("s_cmp_lg_u32 s14, 2\ns_cbranch_scc1 L_nogu")
    guissue(GA)
    if not wdearly:
        for k in range(4): A(f"s_nop 0\nglobal_load_dwordx4 v[{WD+4*k}:{WD+4*k+3}], v66, s[32:33] offset:{1280*k}{NT}")
    A("L_nogu:")
    for k in range(n1): woload(k)
    stamp(10)
    A("s_barrier")
    stamp(8)
    oiss(SA)
    for k in range(n1,8-n3): woload(k)
    stamp(6)
    A("s_cbranch_scc1 L_o_wait")
    poll2("gu",GA,None,T+4,8-n3+3+(0 if wdearly else 4),0,guissue)
    stamp(7)
    red8regs(GA,T)
    C1=f2u(-2*math.sqrt(2/math.pi)*math.log2(math.e)); C3=f2u(0.044715)
    g=T; t=T+1
    bf16r(g)
    A(f"""v_mul_f32 v{t}, v{g}, v{g}
    v_mul_f32 v{t}, {hex(C3)}, v{t}
    v_fma_f32 v{t}, v{t}, v{g}, v{g}
    v_mul_f32 v{t}, {hex(C1)}, v{t}
    v_exp_f32 v{t}, v{t}
    v_add_f32 v{t}, 1.0, v{t}
    v_rcp_f32 v{t}, v{t}
    v_mul_f32 v{t}, v{g}, v{t}""")
    bf16r(t)
    A(f"""v_mul_f32_dpp v{t}, v{g}, v{t} row_ror:8{DPP}
    v_cvt_pk_bf16_f32 v{t}, v{t}, v{t}
    ds_write_b32 v64, v{t} offset:{L_HD}
    ds_read_b128 v[44:47], v65 offset:{L_HD}
    s_waitcnt lgkmcnt(0)""")
    for k in range(4):
        for d in range(4): A(f"v_and_b32 v{48+4*k+d}, v{44+k}, v{8+d}")
    A(f"s_waitcnt vmcnt({11-n3})")
    for k in range(4): A(f"v_mfma_f32_16x16x32_bf16 v[16:19], v[{48+4*k}:{51+4*k}], v[{WD+4*k}:{WD+4*k+3}], {'0' if k==0 else 'v[16:19]'}")
    A("s_waitcnt lgkmcnt(0)")
    halffold(16,23)
    A("L_o_wait:")
    A("s_waitcnt lgkmcnt(0)\ns_mov_b32 s9, 0")
    M=36; CK=37; R=40; W=120; SB=24
    tg=["s42","s51","s52","s53"]
    def chk(r,k,first=False):
        if first: A(f"v_xor_b32 v{CK}, {tg[k]}, v{r+k}")
        else: A(f"v_bitop3_b32 v{CK}, v{CK}, v{r+k}, {tg[k]} bitop3:0xf6")
    X=SA; Y=SA+4; ML=SA+8; WM=38; LL=39; AB=144
    A(f"s_waitcnt vmcnt({8-n1})")
    stamp(12)
    A(f"""L_flag:
    v_cmp_ne_u32 vcc, s42, v39
    s_cbranch_vccz L_o_in
    global_load_dword v39, v21, s[40:41] offset:{FLAG} sc1
    s_add_u32 s43, s43, 1
    s_cmp_lt_u32 s43, {spin}
    s_waitcnt vmcnt(0)
    s_cbranch_scc1 L_flag
    s_branch L_o_in""")
    A("L_o_first:")
    if bsleep: A(f"s_cmp_lg_u32 s9, 0\ns_cbranch_scc1 L_o_loop\ns_sleep {bsleep}")
    A("L_o_loop:")
    oiss(SA)
    A(f"s_add_u32 s9, s9, 1\ns_cmp_ge_u32 s9, {spin}\ns_cbranch_scc1 L_o_bail")
    A("s_waitcnt vmcnt(0)")
    A("L_o_in:")
    A(f"v_max_f32_dpp v{M}, v{ML}, v{ML} {X1}{DPP}")
    chk(ML,0,True); chk(ML,1)
    A(f"v_max_f32_dpp v{M}, v{M}, v{M} {X2}{DPP}")
    chk(X,0); chk(Y,0)
    A(f"v_max_f32_dpp v{M}, v{M}, v{M} {HM}{DPP}")
    A(f"v_cmp_ne_u32_sdwa vcc, v{CK}, v21 src0_sel:BYTE_0 src1_sel:BYTE_0")
    A(f"v_sub_f32 v{M}, v{ML}, v{M}\nv_exp_f32 v{M}, v{M}")
    A("s_cbranch_vccnz L_o_first")
    stamp(11)
    A(f"v_mul_f32 v{LL}, v{ML+1}, v{M}")
    A(f"v_mov_b32_dpp v{WM}, v{M} {HM}{DPP}")
    for k in range(4): A(f"v_mul_f32 v{R+k}, v{X+k}, v{M}")
    for k in range(4): A(f"v_fmac_f32_dpp v{R+k}, v{Y+k}, v{WM} {HM}{DPP}")
    for m in (X1,X2):
        for k in range(4): A(f"v_add_f32_dpp v{R+k}, v{R+k}, v{R+k} {m}{DPP}")
    for k in range(4): A(f"v_cvt_pk_bf16_f32 v{R+k}, v{R+k}, v{R+k}")
    def omfma(j):
        if j==n1: A("s_waitcnt vmcnt(0)")
        A(f"v_mfma_f32_16x16x32_bf16 v[12:15], v[{AB+4*j}:{AB+4*j+3}], v[{WO+4*j}:{WO+4*j+3}], {'0' if j==0 else 'v[12:15]'}")
    for k in range(8):
        abuild(AB+4*k, R+(k&3), k<4)
        if k>=1: omfma(k-1)
    A(f"v_add_f32_dpp v{LL}, v{LL}, v{LL} {X1}{DPP}")
    omfma(7)
    chk(ML,2); chk(X,1)
    A(f"v_add_f32_dpp v{LL}, v{LL}, v{LL} {X2}{DPP}")
    chk(X,2); chk(X,3)
    A(f"v_add_f32_dpp v{LL}, v{LL}, v{LL} {HM}{DPP}")
    chk(ML,3)
    A(f"v_rcp_f32 v{LL}, v{LL}")
    chk(Y,1); chk(Y,2); chk(Y,3)
    A(f"v_mul_f32 v{LL}, v22, v{LL}")
    A(f"v_cmp_ne_u32_sdwa vcc, v{CK}, v21 src0_sel:BYTE_0 src1_sel:BYTE_0")
    stamp(13)
    halffold(12,LL,"s_cbranch_vccnz L_o_loop\nL_o_bail:")
    A(f"""s_mov_b64 exec, s[58:59]
    global_atomic_add_f32 v16, v6, v70, s[40:41] {afl}
    global_atomic_add_f32 v17, v6, v71, s[40:41] offset:{4*rs} {afl}""")
    stamp(9)
    if stamps: A("s_lshl_b32 s9, s9, 8\ns_add_u32 s43, s43, s9")
    A(";NOPAD{")
    A(f"""s_waitcnt vmcnt(0)
    v_mov_b32_dpp v18, v16 row_newbcast:8{DPP}
    v_mov_b32_dpp v19, v17 row_newbcast:8{DPP}
    v_add_f32 v16, v16, v70
    v_add_f32 v17, v17, v71
    s_mov_b64 exec, s[54:55]
    v_cmp_eq_f32 s[56:57], v19, v69
    v_cvt_pk_bf16_f32 v16, v16, v17
    v_cmpx_eq_f32 vcc, v18, v69
    s_cbranch_execz L_s0
    global_store_short v68, v16, s[36:37] {ofl}
    L_s0:
    s_mov_b64 exec, s[56:57]
    s_cbranch_execz L_s1
    global_store_short_d16_hi v68, v16, s[36:37] offset:2 {ofl}
    s_cmp_lg_u32 s13, 0
    s_cbranch_scc1 L_s1
    s_and_b64 exec, exec, 1
    s_cbranch_execz L_s1
    v_mov_b32 v17, s42
    global_store_dword v68, v17, s[40:41]
    L_s1:""")
    if stamps: A("s_branch L_fin")
    A("s_endpgm")
    A(";NOPAD}")
    A("L_init:")
    A(f"""v_lshrrev_b32 v60, 2, v0
    v_mul_u32_u24 v60, {rs}, v60
    v_and_b32 v61, 3, v0
    v_lshl_add_u32 v60, v61, 4, v60
    v_add_u32 v60, {F_BASE}, v60
    v_mov_b32 v56, 0
    v_mov_b32 v57, 0
    v_mov_b32 v58, 0
    v_mov_b32 v59, 0""")
    for k in range(5):
        A(f"global_store_dwordx4 v60, v[56:59], s[40:41] sc1")
        if k<4: A(f"v_add_u32 v60, {16*rs}, v60")
    A("s_branch L_initd")
    A("L_p_exit:")
    A("s_cmp_lg_u32 s3, 4\ns_cbranch_scc1 L_x1")
    G0=30
    A(f"s_cmp_lt_u32 s4, 24\ns_cbranch_scc1 L_g3\ns_waitcnt vmcnt(0)\ns_cmp_lg_u32 s2, 192\ns_cbranch_scc1 L_g3\nv_mov_b32 v{G0}, s42\ns_mov_b64 exec, 1\nglobal_store_dword v21, v{G0}, s[40:41] offset:{FLAG} sc1\ns_mov_b64 exec, -1\nL_g3:\nv_mov_b32 v{G0}, 0\ns_mov_b32 s8, 0xffff0000")
    for k in range(5):
        a,b,c,d=G0+2,G0+3,G0+4,G0+5
        A(f"""v_lshlrev_b32 v{a}, 16, v{GX+k}
        v_and_b32 v{b}, s8, v{GX+k}
        v_lshlrev_b32 v{c}, 16, v{GX+6+k}
        v_and_b32 v{d}, s8, v{GX+6+k}
        v_pk_mul_f32 v[{a}:{b}], v[{a}:{b}], v[{c}:{d}]
        v_cvt_pk_bf16_f32 v{a}, v{a}, v{b}
        v_lshlrev_b32 v{b}, 16, v{a}
        v_and_b32 v{a}, s8, v{a}
        v_add_f32 v{G0}, v{G0}, v{b}
        v_add_f32 v{G0}, v{G0}, v{a}""")
    allred8("v_add_f32",[G0]); allred_oct("v_add_f32",G0,G0+1)
    bf16r(G0)
    A(f"""v_mul_f32 v{G0}, {hex(f2u(-math.log2(math.e)))}, v{G0}
    v_exp_f32 v{G0}, v{G0}
    v_add_f32 v{G0}, 1.0, v{G0}
    v_rcp_f32 v{G0}, v{G0}""")
    bf16r(G0)
    A(f"v_sub_f32 v{G0+1}, 1.0, v{G0}")
    bf16r(G0+1)
    if outpre: A(f"s_mov_b64 exec, 1\nglobal_load_dword v60, v21, s[36:37] {outpre}\ns_mov_b64 exec, -1")
    A(f"ds_write_b64 v21, v[{G0}:{G0+1}] offset:{L_GATE}\ns_waitcnt lgkmcnt(0)")
    A("L_x1:\ns_barrier")
    if stamps: A("s_branch L_x2")
    A("s_endpgm")
    A(";NEWBLOCK")
    A("L_kv2:")
    stamp(4)
    poll2("q",PA,PB if pb<17 else None,S+4,after('PA1'),after('PB1') if pb<17 else 0,qissue)
    stamp(5)
    vload()
    red8regs(PA,S)
    A(f"""v_cvt_pk_bf16_f32 v{S}, v{S}, v{S}
    ds_write_b16 v177, v{S} offset:{L_QB}
    ds_read_b128 v[12:15], v178 offset:{L_QB}
    s_waitcnt lgkmcnt(0)""")
    vload()
    for oc in range(16): A(f"v_dot2_f32_bf16 v{S+oc}, v{K0+4*oc}, v12, 0")
    for d in range(1,4):
        for oc in range(16): A(f"v_dot2c_f32_bf16 v{S+oc}, v{K0+4*oc+d}, v{12+d}")
        if d!=2: vload()
    T=PA
    for k in range(8): A(f"v_add_f32_dpp v{T+k}, v{S+k}, v{S+k} {HM} row_mask:0xf bank_mask:0x5")
    for k in range(8): A(f"v_add_f32_dpp v{T+k}, v{S+8+k}, v{S+8+k} {HM} row_mask:0xf bank_mask:0xa")
    for m in (X1,X2):
        for k in range(8): A(f"v_add_f32_dpp v{T+k}, v{T+k}, v{T+k} {m}{DPP}")
    A(f"""s_mov_b32 exec_lo, 0x11111111
    s_mov_b32 exec_hi, 0x11111111
    ds_write_b128 v179, v[{T}:{T+3}]
    ds_write_b128 v179, v[{T+4}:{T+7}] offset:16
    s_mov_b64 exec, 1
    ds_add_u32 v183, v184 offset:{L_CNT}
    s_mov_b64 exec, -1""")
    stamp(6)
    vload()
    A("L_sc:")
    A(f"""ds_read_b32 v16, v183 offset:{L_CNT}
    ds_read_b64 v[18:19], v180
    ds_read_b64 v[20:21], v180 offset:512
    ds_read_b64 v[22:23], v180 offset:1024
    s_waitcnt lgkmcnt(3)
    v_readfirstlane_b32 s8, v16
    s_cmp_lt_u32 s8, 3
    s_waitcnt lgkmcnt(0)
    s_cbranch_scc1 L_sc""")
    stamp(7)
    vload()
    A(f"""v_add_f32 v18, v18, v20
    v_add_f32 v19, v19, v21
    v_add_f32 v18, v18, v22
    v_add_f32 v19, v19, v23
    v_cvt_pk_bf16_f32 v18, v18, v19
    v_and_b32 v19, 0xffff0000, v18
    v_lshlrev_b32 v18, 16, v18
    v_mul_f32 v18, {hex(SCALE)}, v18
    v_mul_f32 v19, {hex(SCALE)}, v19
    v_cvt_pk_bf16_f32 v18, v18, v19
    v_and_b32 v19, 0xffff0000, v18
    v_lshlrev_b32 v18, 16, v18
    v_mul_f32 v18, {hex(LOG2E)}, v18
    v_mul_f32 v19, {hex(LOG2E)}, v19
    v_max_f32 v188, v18, v19""")
    allred8("v_max_f32",[188]); allred_oct("v_max_f32",188,20)
    vload()
    embed(188,ks=[0])
    A(f"""v_sub_f32 v18, v18, v188
    v_sub_f32 v19, v19, v188
    v_exp_f32 v18, v18
    v_exp_f32 v19, v19
    v_cvt_pk_bf16_f32 v20, v18, v18
    v_cvt_pk_bf16_f32 v21, v19, v19
    ds_write_b64 v181, v[20:21] offset:{L_PD}""")
    for j in range(4): A(f"ds_read_b128 v[{S+4*j}:{S+4*j+3}], v182 offset:{L_PD+16*j}")
    A("v_add_f32 v189, v18, v19")
    allred8("v_add_f32",[189]); allred_oct("v_add_f32",189,20)
    while vnext[0]<16: vload(); A("s_nop 0")
    if b1at>15:
        stamp(3)
        A("s_barrier")
    embed(188,ks=[1,2,3])
    A("s_waitcnt lgkmcnt(0)")
    stamp(8)
    for oc in range(17):
        if oc<16:
            for d in range(4): A(f"v_and_b32 v{K0+4*oc+d}, v{S+oc}, v{8+d}")
        if 1<=oc<=8:
            k=oc-1; n=after('V%d'%k)
            if n<after('PA1'): A(f"s_waitcnt vmcnt({n})")
            A(f"v_mfma_f32_16x16x32_bf16 v[12:15], v[{K0+4*k}:{K0+4*k+3}], v[{V0+4*k}:{V0+4*k+3}], {'0' if k==0 else 'v[12:15]'}")
    for k in range(8,16):
        n=after('V%d'%k)
        if n<after('PA1'): A(f"s_waitcnt vmcnt({n})")
        A(f"v_mfma_f32_16x16x32_bf16 v[12:15], v[{K0+4*k}:{K0+4*k+3}], v[{V0+4*k}:{V0+4*k+3}], v[12:15]")
    stamp(9)
    MLX="0xff" if mlrep else "1"
    fold(12,PA)
    if fast:
        A("s_cmp_lg_u64 s[48:49], 0\ns_cbranch_scc1 L_slowpub")
        A(f"global_store_dwordx4 v6, v[12:15], s[40:41]\ns_mov_b64 exec, {MLX}\nglobal_store_dwordx4 v7, v[188:191], s[40:41] offset:2048")
    else:
        A(f"global_store_dwordx4 v6, v[12:15], s[40:41] sc1\ns_mov_b64 exec, {MLX}\nglobal_store_dwordx4 v7, v[188:191], s[40:41] offset:2048 sc1")
    A("L_pubdone:")
    stamp(10)
    A("s_barrier")
    if stamps: A("s_waitcnt vmcnt(0)"); stamp(15)
    if stamps: A("s_branch L_fin\nL_x2:\ns_barrier")
    A("L_fin:")
    stamp(14)
    if stamps:
        A("s_mov_b64 exec, -1")
        A("s_waitcnt lgkmcnt(0)")
        if probe is not None:
            lo,hi,st,sign,wgsel=probe
            A("v_mov_b32 v251, 0\ns_or_b32 s98, s2, s3\ns_cbranch_scc1 L_dbgd\nv_mov_b32 v250, s60\nglobal_store_dword v251, v250, s[38:39] sc1\nL_dbgd:")
            A(f"s_cmp_lt_u32 s3, {lo}\ns_cbranch_scc1 L_end\ns_cmp_gt_u32 s3, {hi}\ns_cbranch_scc1 L_end")
            if wgsel is not None: A(f"s_cmp_lg_u32 s2, {wgsel}\ns_cbranch_scc1 L_end")
            A(f"L_dbgw:\ns_sleep 32\ns_memrealtime s[96:97]\ns_waitcnt lgkmcnt(0)\ns_sub_u32 s96, s96, s60\ns_cmp_lt_u32 s96, 3500\ns_cbranch_scc1 L_dbgw")
            A("global_load_dword v250, v251, s[38:39] sc1\ns_waitcnt vmcnt(0)\nv_readfirstlane_b32 s95, v250")
            A(f"s_sub_u32 s94, s{60+2*st}, s95\ns_mul_i32 s94, s94, {10*sign}\ns_add_u32 s94, s94, {6000 if sign>=0 else 30000}")
            A(f"s_min_u32 s94, s94, 50000")
            A(f"L_dbgx:\ns_sleep 2\ns_memrealtime s[96:97]\ns_waitcnt lgkmcnt(0)\ns_sub_u32 s96, s96, s95\ns_cmp_lt_u32 s96, s94\ns_cbranch_scc1 L_dbgx")
        else:
            A("L_dbgw:\ns_sleep 32\ns_memrealtime s[96:97]\ns_waitcnt lgkmcnt(0)\ns_sub_u32 s96, s96, s60\ns_cmp_lt_u32 s96, 1500\ns_cbranch_scc1 L_dbgw")
            for i in range(16): A(f"v_writelane_b32 v250, s{60+2*i}, {i}")
            A("v_writelane_b32 v250, s46, 16")
            A("v_writelane_b32 v250, s43, 17")
            A("s_getreg_b32 s98, hwreg(HW_REG_HW_ID)")
            A("v_writelane_b32 v250, s98, 18")
            A("s_lshl_b32 s98, s2, 3\ns_add_u32 s98, s98, s3\ns_lshl_b32 s98, s98, 8")
            A(f"s_add_u32 s98, s98, {STAMP_BASE}")
            A("v_lshl_add_u32 v251, v0, 2, s98")
            A("global_store_dword v251, v250, s[40:41]")
    A("L_end:")
    A("s_endpgm")
    if fast:
        A("L_slowpub:")
        A(f"global_store_dwordx4 v6, v[12:15], s[40:41] sc1\ns_mov_b64 exec, {MLX}\nglobal_store_dwordx4 v7, v[188:191], s[40:41] offset:2048 sc1\ns_branch L_pubdone")
    if noout: A.L[:]=[("    s_nop 0" if "global_store_short" in l else l) for l in A.L]
    body,n=pad(A.L)
    if warm:
        body,pads=place_pads(body, entry_off=0, verbose=verbose, target=lambda k,N: "L_back" if k<3 else "L_back2")
        assert len(pads)<=8
        i=body.index("L_back2:")
        for k in range(len(pads),8): body.insert(i, f"L_t{k}:")
    nv = 256 if stamps else 200
    hdr=open(f"cdna_kernels/{NAME}.s.ref").read().split("; Override launch")[0] if header else ""
    txt=hdr+f"""; @launch grid=(256,1,1) block=(512,1,1) lds={LDS}
.amdgcn_target "amdgcn-amd-amdhsa--gfx950"
.text
.globl {kname}
.p2align 12
.fill 832, 4, 0xbf800000
.p2align 8
.type {kname},@function
"""+"\n".join(body)+f"""
.section .rodata,"a"
.p2align 6
.amdhsa_kernel {kname}
  .amdhsa_next_free_vgpr {nv}
  .amdhsa_next_free_sgpr 102
  .amdhsa_accum_offset {nv}
  .amdhsa_group_segment_fixed_size 0
  .amdhsa_kernarg_size 104
  .amdhsa_user_sgpr_count 2
  .amdhsa_user_sgpr_kernarg_segment_ptr 1
  .amdhsa_system_sgpr_workgroup_id_x 1
  .amdhsa_float_denorm_mode_32 3
.end_amdhsa_kernel
"""
    open(path,"w").write(txt)
    return n
if __name__=="__main__":
    from build import build
    p=f"h15.s"
    print("nops:",gen(p, verbose=True))
    print(build(p, NAME+"_kernel"))
```

```python
import sys, struct, math
sys.path.insert(0,"gen"); sys.path.insert(0,"exp")
from asmlib import Asm, pad, place_pads
NAME="gated_mix__sliding_block_cached__glu_gated_geglu__decode"
def f2u(x): return struct.unpack("<I", struct.pack("<f", x))[0]
LOG2E=f2u(math.log2(math.e)); SCALE=f2u(192**-0.5)
QG_BASE=0x1000; O_BASE=0x52000; F_BASE=0xA0000; STAMP_BASE=0x100000; FLAG=0x800
DPP=" row_mask:0xf bank_mask:0xf"
X1="quad_perm:[1,0,3,2]"; X2="quad_perm:[2,3,0,1]"; HM="row_half_mirror"
L_SC=0; L_GATE=1536; L_CNT=1544; L_QB=1600; L_PD=2048; L_HD=3584
LDS=3584+1024

def gen(path, kname=NAME+"_kernel", nt=True, stamps=False, pa=3, pb=6, cap=10, nv0=9, n1=2, n3=0, bsleep=0, px=5, ldel=None, hdel=None, lcap=None, caps=None, px2=None, mlrep=False, noout=False, b1at=15, dbl=0, rs=256, ofl='', afl='sc0 sc1', wdearly=False, gdelay=False, spin=1<<20, warm=True, header=True,
        olsleep=0, fback=3, fthr=24, gupos=0, probe=None, fast=True, pretouch=False, verbose=False, outpre=False, osets=2, skip='', fdepth=3, fgap=0):
    A=Asm()
    NT=" nt" if nt else ""
    def stamp(i):
        if stamps: A(f"s_memrealtime s[{60+2*i}:{61+2*i}]")
    masks="""v_mov_b32 v12, 0xffff
        v_mov_b32 v13, 0
        v_lshlrev_b64 v[12:13], v3, v[12:13]
        v_cmp_gt_u32 vcc, 4, v2
        s_nop 1
        v_cndmask_b32 v8, 0, v12, vcc
        v_cndmask_b32 v9, 0, v13, vcc
        v_cndmask_b32 v10, v12, 0, vcc
        v_cndmask_b32 v11, v13, 0, vcc"""
    def embed(r, tag="s42", ks=range(4)):
        for k in ks: A(f"v_mov_b32_sdwa v{r+k}, {tag} dst_sel:BYTE_0 dst_unused:UNUSED_PRESERVE src0_sel:BYTE_{k}")
    def fold(acc,tmp,tag="s42"):
        for k in range(4): A(f"v_permlane32_swap_b32 v{acc+k}, v{tmp+k}")
        for k in range(4): A(f"v_add_f32_dpp v{acc+k}, v{tmp+k}, v{acc+k} row_ror:8{DPP}")
        embed(acc,tag)
        A("s_mov_b64 exec, 0x00ff00ff")
    def cmpx(r,n=4):
        for k in range(n): A(f"v_cmpx_eq_u32_sdwa vcc, v{r+k}, s42 src0_sel:BYTE_0 src1_sel:BYTE_{k}")
    def checkq(r, t):
        A(f"v_xor_b32_sdwa v{t}, v{r+3}, s42 dst_sel:DWORD dst_unused:UNUSED_PAD src0_sel:BYTE_0 src1_sel:BYTE_3")
        A(f"v_xor_b32_sdwa v{t+1}, v{r+7}, s42 dst_sel:DWORD dst_unused:UNUSED_PAD src0_sel:BYTE_0 src1_sel:BYTE_3")
        A(";NOPAD{")
        cmpx(r,3); cmpx(r+4,3)
        A(f"v_cmpx_gt_u32 vcc, 8, v{t}\nv_cmpx_gt_u32 vcc, 8, v{t+1}")
        A("s_cmp_eq_u64 exec, -1\ns_mov_b64 exec, -1\n;NOPAD}")
    def poll2(name, PA, PB, t, wa, wb, reissue):
        A(f"s_waitcnt vmcnt({wa})")
        if PB is not None:
            checkq(PA,t)
            A(f"s_cbranch_scc1 L_{name}_ok")
            A(f"s_add_u32 s43, s43, 1\ns_waitcnt vmcnt({wb})")
            for k in range(4): A(f"v_mov_b64 v[{PA+2*k}:{PA+2*k+1}], v[{PB+2*k}:{PB+2*k+1}]")
        A(f"L_{name}_chk:")
        checkq(PA,t)
        A(f"s_cbranch_scc1 L_{name}_ok")
        reissue(PA)
        A(f"s_and_b32 s8, s43, 3\ns_cmp_lg_u32 s8, 3\ns_cbranch_scc1 L_{name}_nowb\nbuffer_wbl2 sc1\nL_{name}_nowb:")
        A(f"s_add_u32 s43, s43, 1\ns_cmp_lt_u32 s43, {spin}\ns_waitcnt vmcnt(0)\ns_cbranch_scc1 L_{name}_chk")
        A(f"L_{name}_ok:")
        A(f"v_cmp_ne_u32 s[48:49], s46, v{t}")
        A(f"s_cmp_eq_u64 s[48:49], 0\ns_cbranch_scc1 L_{name}_loc\nbuffer_wbl2 sc1\nL_{name}_loc:")
        A("s_movk_i32 s8, 0xff00")
        for k in range(8): A(f"v_and_b32 v{PA+k}, s8, v{PA+k}")
    def bf16r(r):
        A(f"v_cvt_pk_bf16_f32 v{r}, v{r}, v{r}\nv_and_b32 v{r}, 0xffff0000, v{r}")
    def allred_oct(op, r, t):
        A(f"{op}_dpp v{r}, v{r}, v{r} row_ror:8{DPP}")
        A(f"v_mov_b32 v{t}, v{r}\nv_permlane16_swap_b32 v{r}, v{t}\n{op} v{r}, v{r}, v{t}")
        A(f"v_mov_b32 v{t}, v{r}\nv_permlane32_swap_b32 v{r}, v{t}\n{op} v{r}, v{r}, v{t}")
    def allred8(op, rs):
        for m in (X1,X2,HM):
            for r in rs: A(f"{op}_dpp v{r}, v{r}, v{r} {m}{DPP}")
    def red8regs(a, b):
        for k in range(4): A(f"v_add_f32_dpp v{b+k}, v{a+k}, v{a+k} row_ror:8 row_mask:0xf bank_mask:0x3")
        for k in range(4): A(f"v_add_f32_dpp v{b+k}, v{a+4+k}, v{a+4+k} row_ror:8 row_mask:0xf bank_mask:0xc")
        A(f"v_permlane16_swap_b32 v{b}, v{b+1}\nv_permlane16_swap_b32 v{b+2}, v{b+3}")
        A(f"v_add_f32 v{b}, v{b}, v{b+1}\nv_add_f32 v{b+2}, v{b+2}, v{b+3}")
        A(f"v_permlane32_swap_b32 v{b}, v{b+2}\nv_add_f32 v{b}, v{b}, v{b+2}")
    def abuild(dst, src, low):
        for d in range(4):
            own = (d<2)==low
            if own: A(f"v_and_b32 v{dst+d}, v{src}, v{8+d}")
            else: A(f"v_and_b32_dpp v{dst+d}, v{src}, v{8+d} {HM}{DPP}")

    def halffold(acc, sc, mid=None):
        A(f"v_permlane32_swap_b32 v{acc}, v{acc+2}\nv_permlane32_swap_b32 v{acc+1}, v{acc+3}")
        if mid: A(mid)
        for k in range(2): A(f"v_fmac_f32_dpp v{70+k}, v{acc+k}, v{sc} quad_perm:[0,1,2,3] row_mask:0xf bank_mask:0x3")
        for k in range(2): A(f"v_fmac_f32_dpp v{70+k}, v{acc+2+k}, v{sc} row_ror:8 row_mask:0xf bank_mask:0x3")
    A(f"{kname}:")
    stamp(0)
    A("""s_cmp_ge_u32 s2, 256
    s_cbranch_scc1 L_end
    s_load_dwordx16 s[16:31], s[0:1], 0
    s_load_dwordx8 s[32:39], s[0:1], 64
    s_load_dwordx2 s[40:41], s[0:1], 96
    v_lshrrev_b32 v1, 6, v0
    v_and_b32 v0, 63, v0
    v_readfirstlane_b32 s3, v1
    s_and_b32 s4, s2, 7
    s_lshr_b32 s5, s2, 6
    s_lshl3_add_u32 s4, s5, s4
    s_bfe_u32 s5, s2, 0x30003
    v_lshrrev_b32 v1, 3, v0
    v_and_b32 v2, 7, v0
    v_lshlrev_b32 v3, 4, v2
    s_mov_b32 s43, 0
    s_getreg_b32 s46, hwreg(HW_REG_XCC_ID, 0, 3)
    s_cmp_ge_u32 s3, 5
    s_cbranch_scc1 L_kv""")
    W0=24; A0=120; WO=72; WD=104; GX=72
    A(f"""s_setprio 1
    s_mul_i32 s7, s4, 3
    s_add_u32 s7, s7, s3
    s_movk_i32 s6, 0x3000
    s_cmp_lt_u32 s3, 3
    s_cselect_b32 s7, s7, s4
    s_cselect_b32 s6, s6, 0xc00
    s_mul_i32 s8, s5, 80
    v_mad_u32_u24 v5, v1, 10, s8
    v_mul_u32_u24 v4, s6, v5
    s_lshl_b32 s7, s7, 7
    v_add3_u32 v4, v4, v3, s7
    v_lshlrev_b32 v5, 1, v5
    s_cmp_ge_u32 s4, 24
    s_cselect_b32 s9, 3, 5
    s_lshl2_add_u32 s12, s5, s3
    s_cmp_eq_u32 s5, 7
    s_subb_u32 s12, s12, 0
    s_mul_i32 s13, s12, 43
    s_lshr_b32 s13, s13, 7
    s_mul_i32 s8, s13, 3
    s_sub_u32 s12, s12, s8
    s_movk_i32 s8, 10240
    v_mad_u32_u24 v22, v1, s8, v3
    s_lshl_b32 s10, s13, 7
    v_add_u32 v22, s10, v22
    s_cmp_lt_u32 s12, 2
    s_cselect_b32 s14, 2, 1
    s_cmp_ge_u32 s4, 24
    s_cselect_b32 s14, 1, s14
    s_cmp_lt_u32 s5, 6
    s_cselect_b32 s8, 4, 3
    s_cmp_ge_u32 s3, s8
    s_cselect_b32 s14, 0, s14
    v_mul_u32_u24 v7, 20, v0
    s_waitcnt lgkmcnt(0)
    s_cmp_lt_u32 s3, 3
    s_cselect_b64 s[26:27], s[22:23], s[28:29]
    s_cmp_lg_u32 s3, 4
    s_cbranch_scc1 L_nog1
    s_mov_b64 s[26:27], s[30:31]
    s_cmp_eq_u32 s2, 192
    s_cbranch_scc1 L_init
    L_initd:
    global_load_dwordx4 v[{GX}:{GX+3}], v7, s[16:17]
    global_load_dword v{GX+4}, v7, s[16:17] offset:16
    global_load_dwordx4 v[{GX+6}:{GX+9}], v7, s[34:35]
    global_load_dword v{GX+10}, v7, s[34:35] offset:16
    L_nog1:
    s_cmp_ge_u32 s3, s9
    s_cbranch_scc1 L_p_iss""")
    A("global_load_dwordx4 v[16:19], v5, s[16:17]")
    A("global_load_dword v20, v5, s[16:17] offset:16")
    if gdelay: A("s_cmp_lt_u32 s3, 3\ns_cbranch_scc1 L_nodel\ns_waitcnt vmcnt(0)\nL_nodel:")
    for oc in range(10):
        A(f"global_load_dwordx4 v[{W0+4*oc}:{W0+4*oc+3}], v4, s[26:27]{NT}")
        if oc<9: A("v_add_u32 v4, s6, v4")
    if wdearly:
        A(f"""s_setprio 0
    s_cmp_lg_u32 s14, 2
    s_cbranch_scc1 L_p_iss
    s_lshl4_add_u32 s8, s4, s12
    s_mul_i32 s8, s8, {4*1280}
    v_add_u32 v4, s8, v22""")
        for k in range(4):
            if k: A("s_nop 0")
            A(f"global_load_dwordx4 v[{WD+4*k}:{WD+4*k+3}], v4, s[32:33] offset:{1280*k}{NT}")
    A("L_p_iss:")
    A("s_setprio 0\ns_load_dword s42, s[40:41], 0")
    if hdel is not None: A(f"s_waitcnt vmcnt({hdel})")
    if ldel is not None: A(f"s_cmp_lt_u32 s4, 24\ns_cbranch_scc1 L_nld\ns_waitcnt vmcnt({ldel})\nL_nld:")
    A("s_barrier")
    stamp(1)
    A("s_branch L_p")
    A("L_kv:")
    K0=16; V0=80; PA=144; PB=152; S=160
    A("s_sub_u32 s6, s3, 5")
    if warm:
        A(""";NOPAD{
        s_mov_b64 exec, 0
        s_cmp_eq_u32 s6, 1
        s_cbranch_scc1 L_t1
        s_cmp_eq_u32 s6, 2
        s_cbranch_scc1 L_t2
        s_branch L_t0
        L_back:
        s_mov_b64 exec, -1
        ;NOPAD}""")
    A(f"""s_mul_i32 s7, s4, 1572864
    s_mul_i32 s8, s5, 49152
    s_add_u32 s7, s7, s8
    s_lshl_b32 s8, s6, 7
    s_add_u32 s7, s7, s8
    s_add_u32 s7, s7, {3072*384+3072}
    s_movk_i32 s8, 6144
    v_mad_u32_u24 v4, v1, s8, v3
    v_add_u32 v4, s7, v4
    v_mov_b32 v183, 0
    ds_write_b32 v183, v183 offset:{L_CNT}
    s_waitcnt lgkmcnt(0)
    s_load_dword s42, s[40:41], 0""")
    stamp(12)
    A("s_barrier")
    fill=[l.strip() for l in (f"""s_mul_i32 s45, s4, 3
    s_add_u32 s45, s45, s6
    s_mul_i32 s45, s45, 3072
    s_add_u32 s45, s45, {O_BASE}
    s_mul_i32 s8, s4, 10240
    s_lshl_b32 s10, s6, 11
    s_add_u32 s8, s8, s10
    s_add_u32 s8, s8, {QG_BASE}
    v_lshl_add_u32 v5, v1, 8, v3
    v_add_u32 v5, s8, v5
    """+masks+f"""
    s_lshl4_add_u32 s8, s5, s45
    v_bfe_u32 v176, v0, 4, 1
    v_lshl_add_u32 v7, v2, 7, s8
    s_lshr_b32 s10, s5, 2
    v_xor_b32 v6, s10, v176
    v_lshl_add_u32 v6, v6, 10, v7
    v_lshrrev_b32 v177, 5, v0
    v_lshl_add_u32 v177, v177, 1, v176
    v_and_b32 v176, 1, v1
    v_lshl_add_u32 v177, v176, 2, v177
    s_lshl_b32 s8, s6, 7
    v_add_u32 v178, s8, v3
    v_lshl_add_u32 v177, v177, 1, v178
    s_lshl_b32 s8, s6, 9
    v_lshrrev_b32 v176, 2, v2
    v_lshlrev_b32 v182, 6, v1
    v_add_u32 v182, s8, v182
    v_lshl_add_u32 v179, v176, 5, v182
    v_lshlrev_b32 v180, 3, v0
    v_add_u32 v181, s8, v180
    v_mov_b32 v184, 1""").split("\n") if l.strip()]
    seq=[]
    def gap():
        if not fill: A("s_nop 0"); return
        for _ in range(2):
            if not fill: break
            l=fill.pop(0)
            if l=="@PRE":
                if pretouch: A("s_mov_b64 exec, 7\nglobal_load_dword v192, v185, s[40:41] sc1\ns_mov_b64 exec, -1"); seq.append("T")
            else: A(l)
    def qissue(r):
        A(f"global_load_dwordx4 v[{r}:{r+3}], v5, s[40:41] sc1\nglobal_load_dwordx4 v[{r+4}:{r+7}], v5, s[40:41] offset:128 sc1")
    def thr(n=1):
        if cap and len(seq)+n>cap: A(f"s_waitcnt vmcnt({cap-n})")
        if caps:
            for (hl,cp) in caps:
                if len(seq)+n>cp: A(f"s_cmp_ge_u32 s4, {hl}\ns_cbranch_scc1 L_cc{len(seq)}\ns_waitcnt vmcnt({cp-n})")
            A(f"L_cc{len(seq)}:")
        if lcap and len(seq)+n>lcap and len(seq)%2==0:
            A(f"s_cmp_lt_u32 s4, 24\ns_cbranch_scc1 L_lc{len(seq)}\ns_waitcnt vmcnt({lcap-n})\nL_lc{len(seq)}:")
    vnext=[0]
    def vload(throttle=False, again=True):
        oc=vnext[0]
        if oc>=16: return
        if throttle: thr()
        A(f"global_load_dwordx4 v[{V0+4*oc}:{V0+4*oc+3}], v4, s[20:21] offset:{oc*384-3072}{NT}"); seq.append(f"V{oc}"); vnext[0]+=1
        if oc==b1at:
            stamp(3); A("s_barrier")
        if not throttle and again and dbl: vload(False, False)
    def after(n): return len(seq)-1-seq.index(n)
    for oc in range(16):
        thr()
        A(f"global_load_dwordx4 v[{K0+4*oc}:{K0+4*oc+3}], v4, s[18:19] offset:{oc*384-3072}{NT}"); seq.append(f"K{oc}"); gap()
    stamp(1)
    for oc in range(nv0+1):
        if oc==pa: qissue(PA); seq+=["PA0","PA1"]; gap(); stamp(2)
        if oc==pb: qissue(PB); seq+=["PB0","PB1"]; gap()
        if oc<nv0: vload(True); gap()
    while fill: gap()
    A("s_waitcnt lgkmcnt(0)\ns_add_u32 s42, s42, 0x01010101\ns_branch L_kv2")
    A("L_p:")
    if warm:
        A(";NOPAD{\ns_mov_b64 exec, 0")
        for w in range(5): A(f"s_cmp_eq_u32 s3, {w}\ns_cbranch_scc1 L_t{3+w}")
        A("L_back2:\ns_mov_b64 exec, -1\n;NOPAD}")
    A(masks)
    A(f"""v_bfe_u32 v7, v0, 4, 1
    v_lshl_add_u32 v7, v7, 7, v3
    s_waitcnt lgkmcnt(0)
    s_add_u32 s42, s42, 0x01010101
    s_mul_i32 s44, s4, 10240
    s_add_u32 s44, s44, {QG_BASE}
    s_cmp_ge_u32 s3, s9
    s_cbranch_scc1 L_p_done
    s_lshl_b32 s47, s46, 24
    s_xor_b32 s47, s47, s42
    s_lshl3_add_u32 s8, s3, s5
    s_lshl_b32 s8, s8, 8
    s_add_u32 s8, s8, s44
    v_add_u32 v6, s8, v7
    s_mov_b32 s10, 0x01000100
    s_mov_b32 s11, 0x03020302
    s_waitcnt vmcnt(10)""")
    for oc in range(10):
        A(f"v_perm_b32 v21, v{16+oc//2}, v{16+oc//2}, s{10+(oc&1)}")
        for d in range(4): A(f"v_and_b32 v{A0+4*oc+d}, v21, v{8+d}")
    for oc in range(10):
        if wdearly:
            if oc==0: A("s_waitcnt vmcnt(4)")
            if oc==6: A("s_cmp_eq_u32 s14, 2\ns_cbranch_scc1 L_p_go\ns_waitcnt vmcnt(0)\nL_p_go:")
        else: A(f"s_waitcnt vmcnt({9-oc})")
        A(f"v_mfma_f32_16x16x32_bf16 v[12:15], v[{A0+4*oc}:{A0+4*oc+3}], v[{W0+4*oc}:{W0+4*oc+3}], {'0' if oc==0 else 'v[12:15]'}")
    stamp(2)
    fold(12,16,"s47")
    A("global_store_dwordx4 v6, v[12:15], s[40:41]\ns_mov_b64 exec, -1")
    stamp(3)
    A("L_p_done:")
    A("v_mov_b32 v21, 0\ns_cmp_eq_u32 s14, 0\ns_cbranch_scc1 L_p_exit")
    A(f"""s_mul_i32 s15, s4, 3
    s_add_u32 s15, s15, s12
    s_mul_i32 s8, s15, {64*1280}
    s_add_u32 s8, s8, 3840
    v_add_u32 v4, s8, v22
    s_lshl4_add_u32 s8, s4, s12
    s_mul_i32 s8, s8, {4*1280}
    v_add_u32 v66, s8, v22
    s_mul_i32 s8, s15, 3072
    s_add_u32 s8, s8, {O_BASE}
    v_lshl_add_u32 v5, v0, 4, s8
    v_add_u32 v67, s8, v3
    s_mul_i32 s8, s13, {8*rs}
    s_add_u32 s8, s8, {F_BASE}
    v_lshrrev_b32 v65, 4, v0
    v_mul_u32_u24 v6, {rs}, v65
    v_and_b32 v64, 15, v0
    v_lshl_add_u32 v6, v64, 2, v6
    v_add_u32 v6, s8, v6
    v_and_b32 v68, 1, v65
    v_lshl_add_u32 v68, v68, 3, v3
    v_lshrrev_b32 v69, 5, v0
    v_lshl_add_u32 v68, v69, 2, v68
    s_lshl_b32 s8, s13, 7
    v_add_u32 v68, s8, v68
    v_mov_b32 v69, 0x42be0000
    v_and_b32 v70, 1, v1
    v_cvt_f32_u32 v70, v70
    v_mov_b32 v71, v70
    s_mov_b32 s54, 0x00ff00ff
    s_mov_b32 s55, s54
    s_mov_b32 s58, 0x01ff01ff
    s_mov_b32 s59, s58
    s_and_b32 s50, s42, 0xff
    s_bfe_u32 s51, s42, 0x80008
    s_bfe_u32 s52, s42, 0x80010
    s_lshr_b32 s53, s42, 24
    s_lshl_b32 s8, s12, 7
    s_add_u32 s8, s8, s44
    s_add_u32 s8, s8, {3*2048}
    v_lshl_add_u32 v20, v1, 8, v3
    v_add_u32 v20, s8, v20
    s_lshl_b32 s8, s3, 8
    v_lshl_add_u32 v64, v64, 4, s8
    v_lshl_add_u32 v64, v65, 2, v64
    v_lshl_add_u32 v65, v1, 4, s8""")
    stamp(4)
    A("s_barrier")
    stamp(5)
    GA=24; T=40
    def guissue(r, fl=" sc1"):
        A(f"global_load_dwordx4 v[{r}:{r+3}], v20, s[40:41]{fl}\nglobal_load_dwordx4 v[{r+4}:{r+7}], v20, s[40:41] offset:2048{fl}")
    A(f"ds_read_b64 v[22:23], v21 offset:{L_GATE}\nglobal_load_dword v39, v21, s[40:41] offset:{FLAG} sc1")
    SA=132
    def oiss(r):
        A(f"""global_load_dwordx3 v[{r+8}:{r+10}], v{5 if mlrep else 67}, s[40:41] offset:2048 sc1
        global_load_dwordx4 v[{r}:{r+3}], v5, s[40:41] sc1
        global_load_dwordx4 v[{r+4}:{r+7}], v5, s[40:41] offset:1024 sc1""")
    def woload(k):
        if k==7: A("v_add_u32 v4, 5120, v4")
        else: A("s_nop 0")
        A(f"global_load_dwordx4 v[{WO+4*k}:{WO+4*k+3}], v4, s[24:25] offset:{(1280*k-3840) if k<7 else 0}{NT}")
    A("s_cmp_lg_u32 s14, 2\ns_cbranch_scc1 L_nogu")
    guissue(GA)
    if not wdearly:
        for k in range(4): A(f"s_nop 0\nglobal_load_dwordx4 v[{WD+4*k}:{WD+4*k+3}], v66, s[32:33] offset:{1280*k}{NT}")
    A("L_nogu:")
    for k in range(n1): woload(k)
    stamp(10)
    A("s_barrier")
    stamp(8)
    for k in range(n1,8-n3): woload(k)
    stamp(6)
    A("s_cbranch_scc1 L_o_wait")
    poll2("gu",GA,None,T+4,8+(0 if wdearly else 4),0,guissue)
    stamp(7)
    red8regs(GA,T)
    C1=f2u(-2*math.sqrt(2/math.pi)*math.log2(math.e)); C3=f2u(0.044715)
    g=T; t=T+1
    bf16r(g)
    A(f"""v_mul_f32 v{t}, v{g}, v{g}
    v_mul_f32 v{t}, {hex(C3)}, v{t}
    v_fma_f32 v{t}, v{t}, v{g}, v{g}
    v_mul_f32 v{t}, {hex(C1)}, v{t}
    v_exp_f32 v{t}, v{t}
    v_add_f32 v{t}, 1.0, v{t}
    v_rcp_f32 v{t}, v{t}
    v_mul_f32 v{t}, v{g}, v{t}""")
    bf16r(t)
    A(f"""v_mul_f32_dpp v{t}, v{g}, v{t} row_ror:8{DPP}
    v_cvt_pk_bf16_f32 v{t}, v{t}, v{t}
    ds_write_b32 v64, v{t} offset:{L_HD}
    ds_read_b128 v[44:47], v65 offset:{L_HD}
    s_waitcnt lgkmcnt(0)""")
    for k in range(4):
        for d in range(4): A(f"v_and_b32 v{48+4*k+d}, v{44+k}, v{8+d}")
    A(f"s_waitcnt vmcnt(8)")
    for k in range(4): A(f"v_mfma_f32_16x16x32_bf16 v[16:19], v[{48+4*k}:{51+4*k}], v[{WD+4*k}:{WD+4*k+3}], {'0' if k==0 else 'v[16:19]'}")
    A("s_waitcnt lgkmcnt(0)")
    halffold(16,23)
    A("L_o_wait:")
    A("s_waitcnt lgkmcnt(0)\ns_mov_b32 s9, 0")
    M=36; CK=37; R=40; W=120; SB=24
    tg=["s42","s51","s52","s53"]
    def chk(r,k,first=False):
        if first: A(f"v_xor_b32 v{CK}, {tg[k]}, v{r+k}")
        else: A(f"v_bitop3_b32 v{CK}, v{CK}, v{r+k}, {tg[k]} bitop3:0xf6")
    X=SA; Y=SA+4; ML=SA+8; WM=38; LL=39; AB=144
    A(f"s_waitcnt vmcnt({px})")
    stamp(12)
    if bsleep: A(f"s_sleep {bsleep}")
    if px2 is not None:
        oiss(SA); A(f"s_waitcnt vmcnt({px2+3})")
    A(f"""L_flag:
    v_cmp_ne_u32 vcc, s42, v39
    s_cbranch_vccz L_o_loop
    global_load_dword v39, v21, s[40:41] offset:{FLAG} sc1
    s_add_u32 s43, s43, 1
    s_cmp_lt_u32 s43, {spin}
    s_waitcnt vmcnt(0)
    s_cbranch_scc1 L_flag""")
    A("L_o_loop:")
    oiss(SA)
    A(f"s_add_u32 s9, s9, 1\ns_cmp_ge_u32 s9, {spin}\ns_cbranch_scc1 L_o_bail")
    A("s_waitcnt vmcnt(0)")
    A("L_o_in:")
    def untag(r,k): A(f"v_xor_b32 v{r+k}, s{50+k}, v{r+k}")
    A(f"v_max_f32_dpp v{M}, v{ML}, v{ML} {X1}{DPP}")
    untag(X,0); untag(Y,0)
    A(f"v_max_f32_dpp v{M}, v{M}, v{M} {X2}{DPP}")
    A(f"v_or_b32 v{CK}, v{X}, v{Y}")
    A(f"v_cmp_ne_u32 s[56:57], s42, v{ML+2}")
    A(f"v_max_f32_dpp v{M}, v{M}, v{M} {HM}{DPP}")
    A(f"v_cmp_ne_u32_sdwa vcc, v{CK}, v21 src0_sel:BYTE_0 src1_sel:BYTE_0")
    A(f"v_sub_f32 v{M}, v{ML}, v{M}\nv_exp_f32 v{M}, v{M}")
    A(f"s_or_b64 s[56:57], s[56:57], vcc")
    A("s_cbranch_scc1 L_o_loop")
    stamp(11)
    A(f"v_mov_b32_dpp v{WM}, v{M} {HM}{DPP}")
    for k in (1,2,3): untag(Y,k)
    for k in (1,2,3): untag(X,k)
    for k in range(4): A(f"v_mul_f32 v{R+k}, v{X+k}, v{M}")
    for k in range(4): A(f"v_fmac_f32_dpp v{R+k}, v{Y+k}, v{WM} {HM}{DPP}")
    for m in (X1,X2):
        for k in range(4): A(f"v_add_f32_dpp v{R+k}, v{R+k}, v{R+k} {m}{DPP}")
    for k in range(4): A(f"v_cvt_pk_bf16_f32 v{R+k}, v{R+k}, v{R+k}")
    def omfma(j):
        A(f"v_mfma_f32_16x16x32_bf16 v[12:15], v[{AB+4*j}:{AB+4*j+3}], v[{WO+4*j}:{WO+4*j+3}], {'0' if j==0 else 'v[12:15]'}")
    for k in range(8):
        abuild(AB+4*k, R+(k&3), k<4)
        if k>=1: omfma(k-1)
    A(f"v_mul_f32 v{LL}, v{ML+1}, v{M}")
    omfma(7)
    A(f"v_or3_b32 v{CK}, v{X+1}, v{X+2}, v{X+3}")
    A(f"v_add_f32_dpp v{LL}, v{LL}, v{LL} {X1}{DPP}")
    A(f"v_or3_b32 v{CK}, v{CK}, v{Y+1}, v{Y+2}")
    A(f"v_or_b32 v{CK}, v{CK}, v{Y+3}")
    A(f"v_add_f32_dpp v{LL}, v{LL}, v{LL} {X2}{DPP}")
    A(f"v_cmp_ne_u32_sdwa vcc, v{CK}, v21 src0_sel:BYTE_0 src1_sel:BYTE_0")
    A("s_cbranch_vccnz L_o_loop")
    A(f"v_add_f32_dpp v{LL}, v{LL}, v{LL} {HM}{DPP}")
    A(f"v_rcp_f32 v{LL}, v{LL}")
    stamp(13)
    A(f"""v_permlane32_swap_b32 v12, v14
    v_permlane32_swap_b32 v13, v15
    v_mul_f32 v{LL}, v22, v{LL}
    v_add_f32_dpp v12, v14, v12 row_ror:8{DPP}
    v_add_f32_dpp v13, v15, v13 row_ror:8{DPP}
    L_o_bail:
    s_mov_b64 exec, s[54:55]
    v_fmac_f32 v70, v12, v{LL}
    v_fmac_f32 v71, v13, v{LL}""")
    A(f"""s_mov_b64 exec, s[58:59]
    global_atomic_add_f32 v16, v6, v70, s[40:41] {afl}
    global_atomic_add_f32 v17, v6, v71, s[40:41] offset:{4*rs} {afl}""")
    stamp(9)
    if stamps: A("s_lshl_b32 s9, s9, 8\ns_add_u32 s43, s43, s9")
    A(";NOPAD{")
    A(f"""s_waitcnt vmcnt(0)
    v_mov_b32_dpp v18, v16 row_newbcast:8{DPP}
    v_mov_b32_dpp v19, v17 row_newbcast:8{DPP}
    v_add_f32 v16, v16, v70
    v_add_f32 v17, v17, v71
    s_mov_b64 exec, s[54:55]
    v_cmp_eq_f32 s[56:57], v19, v69
    v_cvt_pk_bf16_f32 v16, v16, v17
    v_cmpx_eq_f32 vcc, v18, v69
    s_cbranch_execz L_s0
    global_store_short v68, v16, s[36:37] {ofl}
    L_s0:
    s_mov_b64 exec, s[56:57]
    s_cbranch_execz L_s1
    global_store_short_d16_hi v68, v16, s[36:37] offset:2 {ofl}
    s_cmp_lg_u32 s13, 0
    s_cbranch_scc1 L_s1
    s_and_b64 exec, exec, 1
    s_cbranch_execz L_s1
    v_mov_b32 v17, s42
    global_store_dword v68, v17, s[40:41]
    L_s1:""")
    if stamps: A("s_branch L_fin")
    A("s_endpgm")
    A(";NOPAD}")
    A("L_init:")
    A(f"""v_lshrrev_b32 v60, 2, v0
    v_mul_u32_u24 v60, {rs}, v60
    v_and_b32 v61, 3, v0
    v_lshl_add_u32 v60, v61, 4, v60
    v_add_u32 v60, {F_BASE}, v60
    v_mov_b32 v56, 0
    v_mov_b32 v57, 0
    v_mov_b32 v58, 0
    v_mov_b32 v59, 0""")
    for k in range(5):
        A(f"global_store_dwordx4 v60, v[56:59], s[40:41] sc1")
        if k<4: A(f"v_add_u32 v60, {16*rs}, v60")
    A("s_branch L_initd")
    A("L_p_exit:")
    A("s_cmp_lg_u32 s3, 4\ns_cbranch_scc1 L_x1")
    G0=30
    A(f"s_cmp_lt_u32 s4, 24\ns_cbranch_scc1 L_g3\ns_waitcnt vmcnt(0)\ns_cmp_lg_u32 s2, 192\ns_cbranch_scc1 L_g3\nv_mov_b32 v{G0}, s42\ns_mov_b64 exec, 1\nglobal_store_dword v21, v{G0}, s[40:41] offset:{FLAG} sc1\ns_mov_b64 exec, -1\nL_g3:\nv_mov_b32 v{G0}, 0\ns_mov_b32 s8, 0xffff0000")
    for k in range(5):
        a,b,c,d=G0+2,G0+3,G0+4,G0+5
        A(f"""v_lshlrev_b32 v{a}, 16, v{GX+k}
        v_and_b32 v{b}, s8, v{GX+k}
        v_lshlrev_b32 v{c}, 16, v{GX+6+k}
        v_and_b32 v{d}, s8, v{GX+6+k}
        v_pk_mul_f32 v[{a}:{b}], v[{a}:{b}], v[{c}:{d}]
        v_cvt_pk_bf16_f32 v{a}, v{a}, v{b}
        v_lshlrev_b32 v{b}, 16, v{a}
        v_and_b32 v{a}, s8, v{a}
        v_add_f32 v{G0}, v{G0}, v{b}
        v_add_f32 v{G0}, v{G0}, v{a}""")
    allred8("v_add_f32",[G0]); allred_oct("v_add_f32",G0,G0+1)
    bf16r(G0)
    A(f"""v_mul_f32 v{G0}, {hex(f2u(-math.log2(math.e)))}, v{G0}
    v_exp_f32 v{G0}, v{G0}
    v_add_f32 v{G0}, 1.0, v{G0}
    v_rcp_f32 v{G0}, v{G0}""")
    bf16r(G0)
    A(f"v_sub_f32 v{G0+1}, 1.0, v{G0}")
    bf16r(G0+1)
    if outpre: A(f"s_mov_b64 exec, 1\nglobal_load_dword v60, v21, s[36:37] {outpre}\ns_mov_b64 exec, -1")
    A(f"ds_write_b64 v21, v[{G0}:{G0+1}] offset:{L_GATE}\ns_waitcnt lgkmcnt(0)")
    A("L_x1:\ns_barrier")
    if stamps: A("s_branch L_x2")
    A("s_endpgm")
    A(";NEWBLOCK")
    A("L_kv2:")
    stamp(4)
    poll2("q",PA,PB if pb<17 else None,S+4,after('PA1'),after('PB1') if pb<17 else 0,qissue)
    stamp(5)
    vload()
    red8regs(PA,S)
    A(f"""v_cvt_pk_bf16_f32 v{S}, v{S}, v{S}
    ds_write_b16 v177, v{S} offset:{L_QB}
    ds_read_b128 v[12:15], v178 offset:{L_QB}
    s_waitcnt lgkmcnt(0)""")
    vload()
    for oc in range(16): A(f"v_dot2_f32_bf16 v{S+oc}, v{K0+4*oc}, v12, 0")
    for d in range(1,4):
        for oc in range(16): A(f"v_dot2c_f32_bf16 v{S+oc}, v{K0+4*oc+d}, v{12+d}")
        if d!=2: vload()
    T=PA
    for k in range(8): A(f"v_add_f32_dpp v{T+k}, v{S+k}, v{S+k} {HM} row_mask:0xf bank_mask:0x5")
    for k in range(8): A(f"v_add_f32_dpp v{T+k}, v{S+8+k}, v{S+8+k} {HM} row_mask:0xf bank_mask:0xa")
    for m in (X1,X2):
        for k in range(8): A(f"v_add_f32_dpp v{T+k}, v{T+k}, v{T+k} {m}{DPP}")
    A(f"""s_mov_b32 exec_lo, 0x11111111
    s_mov_b32 exec_hi, 0x11111111
    ds_write_b128 v179, v[{T}:{T+3}]
    ds_write_b128 v179, v[{T+4}:{T+7}] offset:16
    s_mov_b64 exec, 1
    ds_add_u32 v183, v184 offset:{L_CNT}
    s_mov_b64 exec, -1""")
    stamp(6)
    vload()
    A("L_sc:")
    A(f"""ds_read_b32 v16, v183 offset:{L_CNT}
    ds_read_b64 v[18:19], v180
    ds_read_b64 v[20:21], v180 offset:512
    ds_read_b64 v[22:23], v180 offset:1024
    s_waitcnt lgkmcnt(3)
    v_readfirstlane_b32 s8, v16
    s_cmp_lt_u32 s8, 3
    s_waitcnt lgkmcnt(0)
    s_cbranch_scc1 L_sc""")
    stamp(7)
    vload()
    A(f"""v_add_f32 v18, v18, v20
    v_add_f32 v19, v19, v21
    v_add_f32 v18, v18, v22
    v_add_f32 v19, v19, v23
    v_cvt_pk_bf16_f32 v18, v18, v19
    v_and_b32 v19, 0xffff0000, v18
    v_lshlrev_b32 v18, 16, v18
    v_mul_f32 v18, {hex(SCALE)}, v18
    v_mul_f32 v19, {hex(SCALE)}, v19
    v_cvt_pk_bf16_f32 v18, v18, v19
    v_and_b32 v19, 0xffff0000, v18
    v_lshlrev_b32 v18, 16, v18
    v_mul_f32 v18, {hex(LOG2E)}, v18
    v_mul_f32 v19, {hex(LOG2E)}, v19
    v_max_f32 v188, v18, v19""")
    allred8("v_max_f32",[188]); allred_oct("v_max_f32",188,20)
    vload()
    A(f"""v_sub_f32 v18, v18, v188
    v_sub_f32 v19, v19, v188
    v_exp_f32 v18, v18
    v_exp_f32 v19, v19
    v_cvt_pk_bf16_f32 v20, v18, v18
    v_cvt_pk_bf16_f32 v21, v19, v19
    ds_write_b64 v181, v[20:21] offset:{L_PD}""")
    for j in range(4): A(f"ds_read_b128 v[{S+4*j}:{S+4*j+3}], v182 offset:{L_PD+16*j}")
    A("v_add_f32 v189, v18, v19")
    allred8("v_add_f32",[189]); allred_oct("v_add_f32",189,20)
    while vnext[0]<16: vload(); A("s_nop 0")
    if b1at>15:
        stamp(3)
        A("s_barrier")
    A("v_mov_b32 v190, s42")
    A("s_waitcnt lgkmcnt(0)")
    stamp(8)
    for oc in range(17):
        if oc<16:
            for d in range(4): A(f"v_and_b32 v{K0+4*oc+d}, v{S+oc}, v{8+d}")
        if 1<=oc<=8:
            k=oc-1; n=after('V%d'%k)
            if n<after('PA1'): A(f"s_waitcnt vmcnt({n})")
            A(f"v_mfma_f32_16x16x32_bf16 v[12:15], v[{K0+4*k}:{K0+4*k+3}], v[{V0+4*k}:{V0+4*k+3}], {'0' if k==0 else 'v[12:15]'}")
    for k in range(8,16):
        n=after('V%d'%k)
        if n<after('PA1'): A(f"s_waitcnt vmcnt({n})")
        A(f"v_mfma_f32_16x16x32_bf16 v[12:15], v[{K0+4*k}:{K0+4*k+3}], v[{V0+4*k}:{V0+4*k+3}], v[12:15]")
    stamp(9)
    MLX="0xff" if mlrep else "1"
    fold(12,PA)
    if fast:
        A("s_cmp_lg_u64 s[48:49], 0\ns_cbranch_scc1 L_slowpub")
        A(f"global_store_dwordx4 v6, v[12:15], s[40:41]\ns_mov_b64 exec, {MLX}\nglobal_store_dwordx4 v7, v[188:191], s[40:41] offset:2048")
    else:
        A(f"global_store_dwordx4 v6, v[12:15], s[40:41] sc1\ns_mov_b64 exec, {MLX}\nglobal_store_dwordx4 v7, v[188:191], s[40:41] offset:2048 sc1")
    A("L_pubdone:")
    stamp(10)
    A("s_barrier")
    if stamps: A("s_waitcnt vmcnt(0)"); stamp(15)
    if stamps: A("s_branch L_fin\nL_x2:\ns_barrier")
    A("L_fin:")
    stamp(14)
    if stamps:
        A("s_mov_b64 exec, -1")
        A("s_waitcnt lgkmcnt(0)")
        if probe is not None:
            lo,hi,st,sign,wgsel=probe
            A("v_mov_b32 v251, 0\ns_or_b32 s98, s2, s3\ns_cbranch_scc1 L_dbgd\nv_mov_b32 v250, s60\nglobal_store_dword v251, v250, s[38:39] sc1\nL_dbgd:")
            A(f"s_cmp_lt_u32 s3, {lo}\ns_cbranch_scc1 L_end\ns_cmp_gt_u32 s3, {hi}\ns_cbranch_scc1 L_end")
            if wgsel is not None: A(f"s_cmp_lg_u32 s2, {wgsel}\ns_cbranch_scc1 L_end")
            A(f"L_dbgw:\ns_sleep 32\ns_memrealtime s[96:97]\ns_waitcnt lgkmcnt(0)\ns_sub_u32 s96, s96, s60\ns_cmp_lt_u32 s96, 3500\ns_cbranch_scc1 L_dbgw")
            A("global_load_dword v250, v251, s[38:39] sc1\ns_waitcnt vmcnt(0)\nv_readfirstlane_b32 s95, v250")
            A(f"s_sub_u32 s94, s{60+2*st}, s95\ns_mul_i32 s94, s94, {10*sign}\ns_add_u32 s94, s94, {6000 if sign>=0 else 30000}")
            A(f"s_min_u32 s94, s94, 50000")
            A(f"L_dbgx:\ns_sleep 2\ns_memrealtime s[96:97]\ns_waitcnt lgkmcnt(0)\ns_sub_u32 s96, s96, s95\ns_cmp_lt_u32 s96, s94\ns_cbranch_scc1 L_dbgx")
        else:
            A("L_dbgw:\ns_sleep 32\ns_memrealtime s[96:97]\ns_waitcnt lgkmcnt(0)\ns_sub_u32 s96, s96, s60\ns_cmp_lt_u32 s96, 1500\ns_cbranch_scc1 L_dbgw")
            for i in range(16): A(f"v_writelane_b32 v250, s{60+2*i}, {i}")
            A("v_writelane_b32 v250, s46, 16")
            A("v_writelane_b32 v250, s43, 17")
            A("s_getreg_b32 s98, hwreg(HW_REG_HW_ID)")
            A("v_writelane_b32 v250, s98, 18")
            A("s_lshl_b32 s98, s2, 3\ns_add_u32 s98, s98, s3\ns_lshl_b32 s98, s98, 8")
            A(f"s_add_u32 s98, s98, {STAMP_BASE}")
            A("v_lshl_add_u32 v251, v0, 2, s98")
            A("global_store_dword v251, v250, s[40:41]")
    A("L_end:")
    A("s_endpgm")
    if fast:
        A("L_slowpub:")
        A(f"global_store_dwordx4 v6, v[12:15], s[40:41] sc1\ns_mov_b64 exec, {MLX}\nglobal_store_dwordx4 v7, v[188:191], s[40:41] offset:2048 sc1\ns_branch L_pubdone")
    if noout: A.L[:]=[("    s_nop 0" if "global_store_short" in l else l) for l in A.L]
    body,n=pad(A.L)
    if warm:
        body,pads=place_pads(body, entry_off=0, verbose=verbose, target=lambda k,N: "L_back" if k<3 else "L_back2")
        assert len(pads)<=8
        i=body.index("L_back2:")
        for k in range(len(pads),8): body.insert(i, f"L_t{k}:")
    nv = 256 if stamps else 200
    hdr=open(f"cdna_kernels/{NAME}.s.ref").read().split("; Override launch")[0] if header else ""
    txt=hdr+f"""; @launch grid=(256,1,1) block=(512,1,1) lds={LDS}
.amdgcn_target "amdgcn-amd-amdhsa--gfx950"
.text
.globl {kname}
.p2align 12
.fill 832, 4, 0xbf800000
.p2align 8
.type {kname},@function
"""+"\n".join(body)+f"""
.section .rodata,"a"
.p2align 6
.amdhsa_kernel {kname}
  .amdhsa_next_free_vgpr {nv}
  .amdhsa_next_free_sgpr 102
  .amdhsa_accum_offset {nv}
  .amdhsa_group_segment_fixed_size 0
  .amdhsa_kernarg_size 104
  .amdhsa_user_sgpr_count 2
  .amdhsa_user_sgpr_kernarg_segment_ptr 1
  .amdhsa_system_sgpr_workgroup_id_x 1
  .amdhsa_float_denorm_mode_32 3
.end_amdhsa_kernel
"""
    open(path,"w").write(txt)
    return n
if __name__=="__main__":
    from build import build
    p=f"h18.s"
    print("nops:",gen(p, verbose=True))
    print(build(p, NAME+"_kernel"))
```

```python
import sys, struct, math
sys.path.insert(0,"gen"); sys.path.insert(0,"exp")
from asmlib import Asm, pad, place_pads
NAME="gated_mix__sliding_block_cached__glu_gated_geglu__decode"
def f2u(x): return struct.unpack("<I", struct.pack("<f", x))[0]
LOG2E=f2u(math.log2(math.e)); SCALE=f2u(192**-0.5)
QG_BASE=0x1000; O_BASE=0x52000; F_BASE=0xA0000; STAMP_BASE=0x100000; FLAG=0x800
DPP=" row_mask:0xf bank_mask:0xf"
X1="quad_perm:[1,0,3,2]"; X2="quad_perm:[2,3,0,1]"; HM="row_half_mirror"
L_SC=0; L_GATE=1536; L_CNT=1544; L_QB=1600; L_PD=2048; L_HD=3584
LDS=3584+1024

DOC='''; ---------------------------------------------------------------------------------------------
; ---------------------------------------------------------------------------------------------
'''
def gen(path, kname=NAME+"_kernel", nt=True, stamps=False, pa=3, pb=6, cap=10, nv0=9, n1=1, n3=0, bsleep=0, px=5, rem=3, xpos=7, onepar=False, cyc=False, st0=False, tlb=False, asg=0, capk=None, ksplit=False, lskip=False, chain=False, nob0=False, wlate=False, early=False, rem2=None, ldel=None, hdel=None, lcap=None, caps=None, px2=None, mlrep=False, noout=False, b1at=15, dbl=0, rs=256, ofl='', afl='sc0 sc1', wdearly=False, gdelay=False, spin=1<<20, warm=True, header=True,
        olsleep=0, fback=3, fthr=24, gupos=0, probe=None, fast=True, pretouch=False, verbose=False, outpre=False, osets=2, skip='', fdepth=3, fgap=0):
    A=Asm()
    NT=(" nt" if nt is True else " "+nt) if nt else ""
    def stamp(i):
        if stamps: A(f"s_memrealtime s[{60+2*i}:{61+2*i}]")
    masks="""v_mov_b32 v12, 0xffff
        v_mov_b32 v13, 0
        v_lshlrev_b64 v[12:13], v3, v[12:13]
        v_cmp_gt_u32 vcc, 4, v2
        s_nop 1
        v_cndmask_b32 v8, 0, v12, vcc
        v_cndmask_b32 v9, 0, v13, vcc
        v_cndmask_b32 v10, v12, 0, vcc
        v_cndmask_b32 v11, v13, 0, vcc"""
    def embed(r, tag="s42", ks=range(4)):
        for k in ks: A(f"v_mov_b32_sdwa v{r+k}, {tag} dst_sel:BYTE_0 dst_unused:UNUSED_PRESERVE src0_sel:BYTE_{k}")
    def fold(acc,tmp,tag="s42"):
        for k in range(4): A(f"v_permlane32_swap_b32 v{acc+k}, v{tmp+k}")
        for k in range(4): A(f"v_add_f32_dpp v{acc+k}, v{tmp+k}, v{acc+k} row_ror:8{DPP}")
        embed(acc,tag)
        A("s_mov_b64 exec, 0x00ff00ff")
    def cmpx(r,n=4):
        for k in range(n): A(f"v_cmpx_eq_u32_sdwa vcc, v{r+k}, s42 src0_sel:BYTE_0 src1_sel:BYTE_{k}")
    def checkq(r, t):
        A(f"v_xor_b32_sdwa v{t}, v{r+3}, s42 dst_sel:DWORD dst_unused:UNUSED_PAD src0_sel:BYTE_0 src1_sel:BYTE_3")
        A(f"v_xor_b32_sdwa v{t+1}, v{r+7}, s42 dst_sel:DWORD dst_unused:UNUSED_PAD src0_sel:BYTE_0 src1_sel:BYTE_3")
        A(";NOPAD{")
        cmpx(r,3); cmpx(r+4,3)
        A(f"v_cmpx_gt_u32 vcc, 8, v{t}\nv_cmpx_gt_u32 vcc, 8, v{t+1}")
        A("s_cmp_eq_u64 exec, -1\ns_mov_b64 exec, -1\n;NOPAD}")
    def poll2(name, PA, PB, t, wa, wb, reissue):
        A(f"s_waitcnt vmcnt({wa})")
        if PB is not None:
            checkq(PA,t)
            A(f"s_cbranch_scc1 L_{name}_ok")
            A(f"s_add_u32 s43, s43, 1\ns_waitcnt vmcnt({wb})")
            for k in range(4): A(f"v_mov_b64 v[{PA+2*k}:{PA+2*k+1}], v[{PB+2*k}:{PB+2*k+1}]")
        A(f"L_{name}_chk:")
        checkq(PA,t)
        A(f"s_cbranch_scc1 L_{name}_ok")
        reissue(PA)
        A(f"s_and_b32 s8, s43, 3\ns_cmp_lg_u32 s8, 3\ns_cbranch_scc1 L_{name}_nowb\nbuffer_wbl2 sc1\nL_{name}_nowb:")
        A(f"s_add_u32 s43, s43, 1\ns_cmp_lt_u32 s43, {spin}\ns_waitcnt vmcnt(0)\ns_cbranch_scc1 L_{name}_chk")
        A(f"L_{name}_ok:")
        A(f"v_cmp_ne_u32 s[48:49], s46, v{t}")
        A(f"s_cmp_eq_u64 s[48:49], 0\ns_cbranch_scc1 L_{name}_loc\nbuffer_wbl2 sc1\nL_{name}_loc:")
        A("s_movk_i32 s8, 0xff00")
        for k in range(8): A(f"v_and_b32 v{PA+k}, s8, v{PA+k}")
    def bf16r(r):
        A(f"v_cvt_pk_bf16_f32 v{r}, v{r}, v{r}\nv_and_b32 v{r}, 0xffff0000, v{r}")
    def allred_oct(op, r, t):
        A(f"{op}_dpp v{r}, v{r}, v{r} row_ror:8{DPP}")
        A(f"v_mov_b32 v{t}, v{r}\nv_permlane16_swap_b32 v{r}, v{t}\n{op} v{r}, v{r}, v{t}")
        A(f"v_mov_b32 v{t}, v{r}\nv_permlane32_swap_b32 v{r}, v{t}\n{op} v{r}, v{r}, v{t}")
    def allred8(op, rs):
        for m in (X1,X2,HM):
            for r in rs: A(f"{op}_dpp v{r}, v{r}, v{r} {m}{DPP}")
    def red8regs(a, b):
        for k in range(4): A(f"v_add_f32_dpp v{b+k}, v{a+k}, v{a+k} row_ror:8 row_mask:0xf bank_mask:0x3")
        for k in range(4): A(f"v_add_f32_dpp v{b+k}, v{a+4+k}, v{a+4+k} row_ror:8 row_mask:0xf bank_mask:0xc")
        A(f"v_permlane16_swap_b32 v{b}, v{b+1}\nv_permlane16_swap_b32 v{b+2}, v{b+3}")
        A(f"v_add_f32 v{b}, v{b}, v{b+1}\nv_add_f32 v{b+2}, v{b+2}, v{b+3}")
        A(f"v_permlane32_swap_b32 v{b}, v{b+2}\nv_add_f32 v{b}, v{b}, v{b+2}")
    def abuild(dst, src, low):
        for d in range(4):
            own = (d<2)==low
            if own: A(f"v_and_b32 v{dst+d}, v{src}, v{8+d}")
            else: A(f"v_and_b32_dpp v{dst+d}, v{src}, v{8+d} {HM}{DPP}")

    def halffold(acc, sc, mid=None):
        A(f"v_permlane32_swap_b32 v{acc}, v{acc+2}\nv_permlane32_swap_b32 v{acc+1}, v{acc+3}")
        if mid: A(mid)
        for k in range(2): A(f"v_fmac_f32_dpp v{70+k}, v{acc+k}, v{sc} quad_perm:[0,1,2,3] row_mask:0xf bank_mask:0x3")
        for k in range(2): A(f"v_fmac_f32_dpp v{70+k}, v{acc+2+k}, v{sc} row_ror:8 row_mask:0xf bank_mask:0x3")
    A(f"{kname}:")
    if cyc: A("s_memtime s[92:93]")
    stamp(0)
    REST="s_load_dwordx8 s[32:39], s[0:1], 64\ns_load_dwordx2 s[40:41], s[0:1], 96"
    A("s_load_dwordx16 s[16:31], s[0:1], 0")
    if not ksplit: A(REST)
    A("""s_cmp_ge_u32 s2, 256
    s_cbranch_scc1 L_end
    v_lshrrev_b32 v1, 6, v0
    v_and_b32 v0, 63, v0
    v_readfirstlane_b32 s3, v1
    s_and_b32 s4, s2, 7
    s_lshr_b32 s5, s2, 6
    s_lshl3_add_u32 s4, s5, s4
    s_bfe_u32 s5, s2, 0x30003
    v_lshrrev_b32 v1, 3, v0
    v_and_b32 v2, 7, v0
    v_lshlrev_b32 v3, 4, v2
    s_mov_b32 s43, 0
    s_getreg_b32 s46, hwreg(HW_REG_XCC_ID, 0, 3)
    s_cmp_ge_u32 s3, 5
    s_cbranch_scc1 L_kv""")
    W0=24; A0=120; WO=72; WD=104; GX=72
    if asg==0:
        ASG="""s_lshl2_add_u32 s12, s5, s3
        s_cmp_eq_u32 s5, 7
        s_subb_u32 s12, s12, 0
        s_mul_i32 s13, s12, 43
        s_lshr_b32 s13, s13, 7
        s_mul_i32 s8, s13, 3
        s_sub_u32 s12, s12, s8"""
    else:
        ASG="""s_lshr_b32 s8, s5, 1
        s_and_b32 s10, s5, 1
        s_cmp_lt_u32 s5, 4
        s_cselect_b32 s8, s5, s8
        s_cselect_b32 s10, 2, s10
        s_add_u32 s8, s8, 6
        s_min_u32 s12, s3, 2
        s_cmp_eq_u32 s3, 2
        s_cselect_b32 s13, s8, s5
        s_cselect_b32 s12, s10, s12"""
        if asg==2:
            ASG+="""
        s_mul_i32 s8, s12, 3
        s_add_u32 s13, s13, s8
        s_sub_u32 s8, s13, 10
        s_cselect_b32 s13, s13, s8"""
    A(f"""s_setprio 1
    s_mul_i32 s7, s4, 3
    s_add_u32 s7, s7, s3
    s_movk_i32 s6, 0x3000
    s_cmp_lt_u32 s3, 3
    s_cselect_b32 s7, s7, s4
    s_cselect_b32 s6, s6, 0xc00
    s_mul_i32 s8, s5, 80
    v_mad_u32_u24 v5, v1, 10, s8
    v_mul_u32_u24 v4, s6, v5
    s_lshl_b32 s7, s7, 7
    v_add3_u32 v4, v4, v3, s7
    v_lshlrev_b32 v5, 1, v5
    s_cmp_ge_u32 s4, 24
    s_cselect_b32 s9, 3, 5
    {ASG}
    s_movk_i32 s8, 10240
    v_mad_u32_u24 v22, v1, s8, v3
    s_lshl_b32 s10, s13, 7
    v_add_u32 v22, s10, v22
    s_cmp_lt_u32 s12, 2
    s_cselect_b32 s14, 2, 1
    s_cmp_ge_u32 s4, 24
    s_cselect_b32 s14, 1, s14
    s_cmp_lt_u32 s5, 6
    s_cselect_b32 s8, 4, 3
    s_cmp_ge_u32 s3, s8
    s_cselect_b32 s14, 0, s14
    s_cmp_ge_u32 s3, 3
    s_cbranch_scc1 L_gu0
    s_waitcnt lgkmcnt(0)
    L_pld:""")
    if cyc: A("s_memtime s[90:91]")
    elif st0: stamp(15)
    for oc in range(10):
        if oc==xpos: A("global_load_dwordx4 v[16:19], v5, s[16:17]\nglobal_load_dword v20, v5, s[16:17] offset:16")
        A(f"global_load_dwordx4 v[{W0+4*oc}:{W0+4*oc+3}], v4, s[22:23]{NT}")
        if oc<9: A("v_add_u32 v4, s6, v4")
        if oc==0 and ksplit: A(REST)
    if st0: A("s_waitcnt vmcnt(11)"); stamp(7)
    A("L_p_iss:")
    A("s_setprio 0")
    if ksplit: A("s_waitcnt lgkmcnt(0)")
    A("s_load_dword s42, s[40:41], 0")
    if hdel is not None: A(f"s_waitcnt vmcnt({hdel})")
    if ldel is not None: A(f"s_cmp_lt_u32 s4, 24\ns_cbranch_scc1 L_nld\ns_waitcnt vmcnt({ldel})\nL_nld:")
    A("s_barrier")
    stamp(1)
    A("s_branch L_p")
    A("L_gu0:")
    if ksplit: A(REST)
    A(f"""v_mul_u32_u24 v7, 20, v0
    s_cmp_eq_u32 s3, 3
    s_waitcnt lgkmcnt(0)
    s_cselect_b64 s[22:23], s[28:29], s[30:31]
    s_cbranch_scc1 L_nog1
    s_cmp_eq_u32 s2, 192
    s_cbranch_scc1 L_init
    L_initd:
    global_load_dwordx4 v[{GX}:{GX+3}], v7, s[16:17]
    global_load_dword v{GX+4}, v7, s[16:17] offset:16
    global_load_dwordx4 v[{GX+6}:{GX+9}], v7, s[34:35]
    global_load_dword v{GX+10}, v7, s[34:35] offset:16
    L_nog1:
    s_cmp_lt_u32 s4, 24
    s_cbranch_scc1 L_pld
    s_branch L_p_iss""")
    A("L_kv:")
    K0=16; V0=80; PA=144; PB=152; S=160
    A("s_sub_u32 s6, s3, 5")
    if wlate: A("s_waitcnt lgkmcnt(0)")
    if ksplit: A(REST)
    if warm:
        if lskip: A("s_cmp_ge_u32 s4, 24\ns_cbranch_scc1 L_back")
        A(""";NOPAD{
        s_mov_b64 exec, 0
        s_cmp_eq_u32 s6, 1
        s_cbranch_scc1 L_t1
        s_cmp_eq_u32 s6, 2
        s_cbranch_scc1 L_t2
        s_branch L_t0
        L_back:
        s_mov_b64 exec, -1
        ;NOPAD}""")
    A(f"""s_mul_i32 s7, s4, 1572864
    s_mul_i32 s8, s5, 49152
    s_add_u32 s7, s7, s8
    s_lshl_b32 s8, s6, 7
    s_add_u32 s7, s7, s8
    s_add_u32 s7, s7, {3072*384+3072}
    s_movk_i32 s8, 6144
    v_mad_u32_u24 v4, v1, s8, v3
    v_add_u32 v4, s7, v4
    v_mov_b32 v183, 0
    ds_write_b32 v183, v183 offset:{L_CNT}
    s_waitcnt lgkmcnt(0)
    s_load_dword s42, s[40:41], 0""")
    if tlb:
        A(f"""s_mov_b64 exec, 1
        s_cmp_eq_u32 s6, 1
        s_cbranch_scc1 L_tl1
        s_cmp_eq_u32 s6, 2
        s_cbranch_scc1 L_tl2
        global_load_dword v192, v4, s[18:19] nt
        global_load_dword v193, v183, s[40:41] offset:64 sc1
        s_branch L_tl3
        L_tl1:
        global_load_dword v192, v4, s[20:21] nt
        global_load_dword v193, v183, s[32:33] nt
        s_branch L_tl3
        L_tl2:
        s_mul_i32 s8, s4, {192*1280}
        v_mov_b32 v194, s8
        global_load_dword v192, v194, s[24:25] nt
        global_load_dword v193, v183, s[36:37] nt
        L_tl3:
        s_mov_b64 exec, -1""")
    stamp(12)
    A("s_barrier")
    fill=[l.strip() for l in (f"""s_mul_i32 s45, s4, 3
    s_add_u32 s45, s45, s6
    s_lshl_b32 s45, s45, 11
    s_add_u32 s45, s45, {O_BASE}
    s_mul_i32 s8, s4, 10240
    s_lshl_b32 s10, s6, 11
    s_add_u32 s8, s8, s10
    s_add_u32 s8, s8, {QG_BASE}
    v_lshl_add_u32 v5, v1, 8, v3
    v_add_u32 v5, s8, v5
    """+masks+f"""
    s_lshl4_add_u32 s8, s5, s45
    v_bfe_u32 v176, v0, 4, 1
    v_lshl_add_u32 v7, v2, 7, s8
    s_lshr_b32 s10, s5, 2
    v_xor_b32 v6, s10, v176
    v_cmp_eq_u32 s[52:53], 1, v6
    v_lshl_add_u32 v6, v6, 10, v7
    v_lshrrev_b32 v177, 5, v0
    v_lshl_add_u32 v177, v177, 1, v176
    v_and_b32 v176, 1, v1
    v_lshl_add_u32 v177, v176, 2, v177
    s_lshl_b32 s8, s6, 7
    v_add_u32 v178, s8, v3
    v_lshl_add_u32 v177, v177, 1, v178
    s_lshl_b32 s8, s6, 9
    v_lshrrev_b32 v176, 2, v2
    v_lshlrev_b32 v182, 6, v1
    v_add_u32 v182, s8, v182
    v_lshl_add_u32 v179, v176, 5, v182
    v_lshlrev_b32 v180, 3, v0
    v_add_u32 v181, s8, v180
    v_mov_b32 v184, 1""").split("\n") if l.strip()]
    seq=['T0','T1'] if tlb else []
    def gap():
        if not fill: A("s_nop 0"); return
        for _ in range(2):
            if not fill: break
            l=fill.pop(0)
            if l=="@PRE":
                if pretouch: A("s_mov_b64 exec, 7\nglobal_load_dword v192, v185, s[40:41] sc1\ns_mov_b64 exec, -1"); seq.append("T")
            else: A(l)
    def qissue(r):
        A(f"global_load_dwordx4 v[{r}:{r+3}], v5, s[40:41] sc1\nglobal_load_dwordx4 v[{r+4}:{r+7}], v5, s[40:41] offset:128 sc1")
    def thr(n=1):
        cp_= capk if (capk is not None and len(seq)<16) else cap
        if cp_ and len(seq)+n>cp_: A(f"s_waitcnt vmcnt({cp_-n})")
        if caps:
            for (hl,cp) in caps:
                if len(seq)+n>cp: A(f"s_cmp_ge_u32 s4, {hl}\ns_cbranch_scc1 L_cc{len(seq)}\ns_waitcnt vmcnt({cp-n})")
            A(f"L_cc{len(seq)}:")
        if lcap and len(seq)+n>lcap and len(seq)%2==0:
            A(f"s_cmp_lt_u32 s4, 24\ns_cbranch_scc1 L_lc{len(seq)}\ns_waitcnt vmcnt({lcap-n})\nL_lc{len(seq)}:")
    vnext=[0]
    def vload(throttle=False, again=True):
        oc=vnext[0]
        if oc>=16: return
        if throttle: thr()
        A(f"global_load_dwordx4 v[{V0+4*oc}:{V0+4*oc+3}], v4, s[20:21] offset:{oc*384-3072}{NT}"); seq.append(f"V{oc}"); vnext[0]+=1
        if oc==b1at:
            stamp(3); A("s_barrier")
        if not throttle and again and dbl: vload(False, False)
    def after(n): return len(seq)-1-seq.index(n)
    for oc in range(16):
        thr()
        A(f"global_load_dwordx4 v[{K0+4*oc}:{K0+4*oc+3}], v4, s[18:19] offset:{oc*384-3072}{NT}"); seq.append(f"K{oc}"); gap()
    stamp(1)
    for oc in range(nv0+1):
        if oc==pa: qissue(PA); seq+=["PA0","PA1"]; gap(); stamp(2)
        if oc==pb: qissue(PB); seq+=["PB0","PB1"]; gap()
        if oc<nv0: vload(True); gap()
    while fill: gap()
    A("s_waitcnt lgkmcnt(0)\ns_add_u32 s42, s42, 0x01010101\ns_branch L_kv2")
    A("L_p:")
    if warm and chain: A("L_back2:")
    elif warm:
        A(";NOPAD{\ns_mov_b64 exec, 0")
        for w in range(5): A(f"s_cmp_eq_u32 s3, {w}\ns_cbranch_scc1 L_t{3+w}")
        A("L_back2:\ns_mov_b64 exec, -1\n;NOPAD}")
    A(masks)
    A(f"""v_bfe_u32 v7, v0, 4, 1
    v_lshl_add_u32 v7, v7, 7, v3
    s_waitcnt lgkmcnt(0)
    s_add_u32 s42, s42, 0x01010101
    s_mul_i32 s44, s4, 10240
    s_add_u32 s44, s44, {QG_BASE}
    s_cmp_ge_u32 s3, s9
    s_cbranch_scc1 L_p_done
    s_lshl_b32 s47, s46, 24
    s_xor_b32 s47, s47, s42
    s_lshl3_add_u32 s8, s3, s5
    s_lshl_b32 s8, s8, 8
    s_add_u32 s8, s8, s44
    v_add_u32 v6, s8, v7
    s_mov_b32 s10, 0x01000100
    s_mov_b32 s11, 0x03020302
    s_waitcnt vmcnt({10-xpos})""")
    for oc in range(10):
        A(f"v_perm_b32 v21, v{16+oc//2}, v{16+oc//2}, s{10+(oc&1)}")
        for d in range(4): A(f"v_and_b32 v{A0+4*oc+d}, v21, v{8+d}")
    for oc in range(10):
        if wdearly:
            if oc==0: A("s_waitcnt vmcnt(4)")
            if oc==6: A("s_cmp_eq_u32 s14, 2\ns_cbranch_scc1 L_p_go\ns_waitcnt vmcnt(0)\nL_p_go:")
        elif oc>=xpos: A(f"s_waitcnt vmcnt({9-oc})")
        A(f"v_mfma_f32_16x16x32_bf16 v[12:15], v[{A0+4*oc}:{A0+4*oc+3}], v[{W0+4*oc}:{W0+4*oc+3}], {'0' if oc==0 else 'v[12:15]'}")
    stamp(2)
    fold(12,16,"s47")
    A("global_store_dwordx4 v6, v[12:15], s[40:41]\ns_mov_b64 exec, -1")
    stamp(3)
    A("L_p_done:")
    A("v_mov_b32 v21, 0\ns_cmp_eq_u32 s14, 0\ns_cbranch_scc1 L_p_exit")
    A(f"""s_mul_i32 s15, s4, 3
    s_add_u32 s15, s15, s12
    s_mul_i32 s8, s15, {64*1280}
    s_add_u32 s8, s8, 3840
    v_add_u32 v4, s8, v22
    s_lshl4_add_u32 s8, s4, s12
    s_mul_i32 s8, s8, {4*1280}
    v_add_u32 v66, s8, v22
    s_lshl_b32 s8, s15, 11
    s_add_u32 s8, s8, {O_BASE}
    v_lshl_add_u32 v5, v0, 4, s8
    s_mul_i32 s8, s13, {8*rs}
    {"s_lshr_b32 s10, s13, 2" if onepar else ""}
    {"s_lshl_b32 s10, s10, 13" if onepar else ""}
    {"s_add_u32 s8, s8, s10" if onepar else ""}
    s_add_u32 s8, s8, {F_BASE}
    v_lshrrev_b32 v65, 4, v0
    v_mul_u32_u24 v6, {rs}, v65
    v_and_b32 v64, 15, v0
    v_lshl_add_u32 v6, v64, 2, v6
    v_add_u32 v6, s8, v6
    v_and_b32 v68, 1, v65
    v_lshl_add_u32 v68, v68, 3, v3
    v_lshrrev_b32 v69, 5, v0
    v_lshl_add_u32 v68, v69, 2, v68
    s_lshl_b32 s8, s13, 7
    v_add_u32 v68, s8, v68
    v_mov_b32 v69, 0x42be0000
    v_and_b32 v70, 1, v1
    v_cvt_f32_u32 v70, v70
    v_mov_b32 v71, v70
    s_mov_b32 s54, 0x00ff00ff
    s_mov_b32 s55, s54
    s_mov_b32 s58, 0x01ff01ff
    s_mov_b32 s59, s58
    s_mov_b32 s50, 0xffff0000
    s_lshl_b32 s8, s12, 7
    s_add_u32 s8, s8, s44
    s_add_u32 s8, s8, {3*2048}
    v_lshl_add_u32 v20, v1, 8, v3
    v_add_u32 v20, s8, v20
    s_lshl_b32 s8, s3, 8
    v_lshl_add_u32 v64, v64, 4, s8
    v_lshl_add_u32 v64, v65, 2, v64
    v_lshl_add_u32 v65, v1, 4, s8""")
    stamp(4)
    A("s_barrier")
    stamp(5)
    GA=24; T=40
    def guissue(r, fl=" sc1"):
        A(f"global_load_dwordx4 v[{r}:{r+3}], v20, s[40:41]{fl}\nglobal_load_dwordx4 v[{r+4}:{r+7}], v20, s[40:41] offset:2048{fl}")
    A(f"ds_read_b64 v[22:23], v21 offset:{L_GATE}\nglobal_load_dword v39, v21, s[40:41] offset:{FLAG} sc1")
    SA=132
    def oiss(r):
        A(f"""global_load_dwordx4 v[{r}:{r+3}], v5, s[40:41] sc1
        global_load_dwordx4 v[{r+4}:{r+7}], v5, s[40:41] offset:1024 sc1""")
    def woload(k):
        if k==7: A("v_add_u32 v4, 5120, v4")
        else: A("s_nop 0")
        A(f"global_load_dwordx4 v[{WO+4*k}:{WO+4*k+3}], v4, s[24:25] offset:{(1280*k-3840) if k<7 else 0}{NT}")
    A("s_cmp_lg_u32 s14, 2\ns_cbranch_scc1 L_nogu")
    guissue(GA)
    if not wdearly:
        for k in range(4): A(f"s_nop 0\nglobal_load_dwordx4 v[{WD+4*k}:{WD+4*k+3}], v66, s[32:33] offset:{1280*k}{NT}")
    A("L_nogu:")
    for k in range(n1): woload(k)
    stamp(10)
    A("s_barrier")
    stamp(8)
    for k in range(n1,8):
        if k==8-rem: A("s_nop 0"); oiss(SA)
        woload(k)
    X2N = -1
    stamp(6)
    A("s_cbranch_scc1 L_o_wait")
    poll2("gu",GA,None,T+4,11+X2N+(0 if wdearly else 4),0,guissue)
    if not st0: stamp(7)
    red8regs(GA,T)
    C1=f2u(-2*math.sqrt(2/math.pi)*math.log2(math.e)); C3=f2u(0.044715)
    g=T; t=T+1
    bf16r(g)
    A(f"""v_mul_f32 v{t}, v{g}, v{g}
    v_mul_f32 v{t}, {hex(C3)}, v{t}
    v_fma_f32 v{t}, v{t}, v{g}, v{g}
    v_mul_f32 v{t}, {hex(C1)}, v{t}
    v_exp_f32 v{t}, v{t}
    v_add_f32 v{t}, 1.0, v{t}
    v_rcp_f32 v{t}, v{t}
    v_mul_f32 v{t}, v{g}, v{t}""")
    bf16r(t)
    A(f"""v_mul_f32_dpp v{t}, v{g}, v{t} row_ror:8{DPP}
    v_cvt_pk_bf16_f32 v{t}, v{t}, v{t}
    ds_write_b32 v64, v{t} offset:{L_HD}
    ds_read_b128 v[44:47], v65 offset:{L_HD}
    s_waitcnt lgkmcnt(0)""")
    for k in range(4):
        for d in range(4): A(f"v_and_b32 v{48+4*k+d}, v{44+k}, v{8+d}")
    A(f"s_waitcnt vmcnt({11+X2N})")
    for k in range(4): A(f"v_mfma_f32_16x16x32_bf16 v[16:19], v[{48+4*k}:{51+4*k}], v[{WD+4*k}:{WD+4*k+3}], {'0' if k==0 else 'v[16:19]'}")
    A("s_waitcnt lgkmcnt(0)")
    halffold(16,23)
    A("L_o_wait:")
    A("s_waitcnt lgkmcnt(0)\ns_mov_b32 s9, 0")
    M=36; CK=37; R=40; W=120; SB=24
    tg=["s42","s51","s52","s53"]
    def chk(r,k,first=False):
        if first: A(f"v_xor_b32 v{CK}, {tg[k]}, v{r+k}")
        else: A(f"v_bitop3_b32 v{CK}, v{CK}, v{r+k}, {tg[k]} bitop3:0xf6")
    X=SA; Y=SA+4; ML=SA+8; WM=38; LL=39; AB=144
    A(f"s_waitcnt vmcnt({11+X2N})")
    A(f"""L_flag:
    v_cmp_ne_u32 vcc, s42, v39
    s_cbranch_vccz L_o_first
    global_load_dword v39, v21, s[40:41] offset:{FLAG} sc1
    s_add_u32 s43, s43, 1
    s_cmp_lt_u32 s43, {spin}
    s_waitcnt vmcnt(0)
    s_cbranch_scc1 L_flag
    L_o_first:
    s_waitcnt vmcnt({rem})""")
    stamp(12)
    A("s_branch L_o_in")
    A("L_o_loop:")
    oiss(SA)
    A(f"s_add_u32 s9, s9, 1\ns_cmp_ge_u32 s9, {spin}\ns_cbranch_scc1 L_o_bail")
    A("s_waitcnt vmcnt(0)")
    A("L_o_in:")
    UX=120; UY=124
    def unp(d,r,k):
        if k&1: A(f"v_and_b32 v{d+k}, s50, v{r+(k>>1)}")
        else: A(f"v_lshlrev_b32 v{d+k}, 16, v{r+(k>>1)}")
    A(f"v_max_f32_dpp v{M}, v{X+2}, v{X+2} {X1}{DPP}")
    A(f"v_cmp_ne_u32 s[56:57], s42, v{X+3}\nv_cmp_ne_u32 vcc, s42, v{Y+3}")
    A(f"v_max_f32_dpp v{M}, v{M}, v{M} {X2}{DPP}")
    A(f"s_or_b64 s[56:57], s[56:57], vcc\ns_cbranch_scc1 L_o_loop")
    stamp(11)
    A(f"v_max_f32_dpp v{M}, v{M}, v{M} {HM}{DPP}")
    A(f"v_sub_f32 v{M}, v{X+2}, v{M}\nv_exp_f32 v{M}, v{M}")
    for k in range(4): unp(UY,Y,k)
    A(f"v_mov_b32_dpp v{WM}, v{M} {HM}{DPP}")
    for k in range(4): unp(UX,X,k)
    for k in range(4): A(f"v_mul_f32 v{R+k}, v{UX+k}, v{M}")
    for k in range(4): A(f"v_fmac_f32_dpp v{R+k}, v{UY+k}, v{WM} {HM}{DPP}")
    for m in (X1,X2):
        for k in range(4): A(f"v_add_f32_dpp v{R+k}, v{R+k}, v{R+k} {m}{DPP}")
    for k in range(4): A(f"v_cvt_pk_bf16_f32 v{R+k}, v{R+k}, v{R+k}")
    def omfma(j):
        A(f"v_mfma_f32_16x16x32_bf16 v[12:15], v[{AB+4*j}:{AB+4*j+3}], v[{WO+4*j}:{WO+4*j+3}], {'0' if j==0 else 'v[12:15]'}")
    ex=[f"v_mul_f32 v{LL}, v{Y+2}, v{M}"]+[f"v_add_f32_dpp v{LL}, v{LL}, v{LL} {m}{DPP}" for m in (X1,X2,HM)]+[f"v_rcp_f32 v{LL}, v{LL}", f"v_mul_f32 v{LL}, v22, v{LL}"]
    for k in range(8):
        abuild(AB+4*k, R+(k&3), k<4)
        if 1<=k<=8-rem: omfma(k-1)
    for j in range(8-rem,8):
        A(ex.pop(0))
        A(f"s_waitcnt vmcnt({7-j})"); omfma(j)
    for e in ex: A(e)
    stamp(13)
    A(f"""v_permlane32_swap_b32 v12, v14
    v_permlane32_swap_b32 v13, v15
    v_add_f32_dpp v12, v14, v12 row_ror:8{DPP}
    v_add_f32_dpp v13, v15, v13 row_ror:8{DPP}
    L_o_bail:
    s_mov_b64 exec, s[54:55]
    v_fmac_f32 v70, v12, v{LL}
    v_fmac_f32 v71, v13, v{LL}""")
    A(f"""s_mov_b64 exec, s[58:59]
    global_atomic_add_f32 v16, v6, v70, s[40:41] {afl}
    global_atomic_add_f32 v17, v6, v71, s[40:41] offset:{4*rs} {afl}""")
    stamp(9)
    if stamps: A("s_lshl_b32 s9, s9, 8\ns_add_u32 s43, s43, s9")
    A(";NOPAD{")
    A(f"""s_waitcnt vmcnt(0)
    v_mov_b32_dpp v18, v16 row_newbcast:8{DPP}
    v_mov_b32_dpp v19, v17 row_newbcast:8{DPP}
    v_add_f32 v16, v16, v70
    v_add_f32 v17, v17, v71
    s_mov_b64 exec, s[54:55]
    v_cmp_eq_f32 s[56:57], v19, v69
    v_cvt_pk_bf16_f32 v16, v16, v17
    v_cmpx_eq_f32 vcc, v18, v69
    s_cbranch_execz L_s0
    global_store_short v68, v16, s[36:37] {ofl}
    L_s0:
    s_mov_b64 exec, s[56:57]
    s_cbranch_execz L_s1
    global_store_short_d16_hi v68, v16, s[36:37] offset:2 {ofl}
    s_cmp_lg_u32 s13, 0
    s_cbranch_scc1 L_s1
    s_and_b64 exec, exec, 1
    s_cbranch_execz L_s1
    v_mov_b32 v17, s42
    global_store_dword v68, v17, s[40:41]
    L_s1:""")
    if stamps: A("s_branch L_fin")
    A("s_endpgm")
    A(";NOPAD}")
    A("L_init:")
    A(f"""v_lshrrev_b32 v60, 2, v0
    v_mul_u32_u24 v60, {rs}, v60
    v_and_b32 v61, 3, v0
    v_lshl_add_u32 v60, v61, 4, v60
    v_add_u32 v60, {F_BASE}, v60
    v_mov_b32 v56, 0
    v_mov_b32 v57, 0
    v_mov_b32 v58, 0
    v_mov_b32 v59, 0""")
    for k in range(5):
        A(f"global_store_dwordx4 v60, v[56:59], s[40:41] sc1")
        if k<4: A(f"v_add_u32 v60, {16*rs+(8192 if (onepar and k%2==1) else 0)}, v60")
    A("s_branch L_initd")
    A("L_p_exit:")
    A("s_cmp_lg_u32 s3, 4\ns_cbranch_scc1 L_x1")
    G0=30
    A(f"s_cmp_lt_u32 s4, 24\ns_cbranch_scc1 L_g3\ns_waitcnt vmcnt(0)\ns_cmp_lg_u32 s2, 192\ns_cbranch_scc1 L_g3\nv_mov_b32 v{G0}, s42\ns_mov_b64 exec, 1\nglobal_store_dword v21, v{G0}, s[40:41] offset:{FLAG} sc1\ns_mov_b64 exec, -1\nL_g3:\nv_mov_b32 v{G0}, 0\ns_mov_b32 s8, 0xffff0000")
    for k in range(5):
        a,b,c,d=G0+2,G0+3,G0+4,G0+5
        A(f"""v_lshlrev_b32 v{a}, 16, v{GX+k}
        v_and_b32 v{b}, s8, v{GX+k}
        v_lshlrev_b32 v{c}, 16, v{GX+6+k}
        v_and_b32 v{d}, s8, v{GX+6+k}
        v_pk_mul_f32 v[{a}:{b}], v[{a}:{b}], v[{c}:{d}]
        v_cvt_pk_bf16_f32 v{a}, v{a}, v{b}
        v_lshlrev_b32 v{b}, 16, v{a}
        v_and_b32 v{a}, s8, v{a}
        v_add_f32 v{G0}, v{G0}, v{b}
        v_add_f32 v{G0}, v{G0}, v{a}""")
    allred8("v_add_f32",[G0]); allred_oct("v_add_f32",G0,G0+1)
    bf16r(G0)
    A(f"""v_mul_f32 v{G0}, {hex(f2u(-math.log2(math.e)))}, v{G0}
    v_exp_f32 v{G0}, v{G0}
    v_add_f32 v{G0}, 1.0, v{G0}
    v_rcp_f32 v{G0}, v{G0}""")
    bf16r(G0)
    A(f"v_sub_f32 v{G0+1}, 1.0, v{G0}")
    bf16r(G0+1)
    if outpre: A(f"s_mov_b64 exec, 1\nglobal_load_dword v60, v21, s[36:37] {outpre}\ns_mov_b64 exec, -1")
    A(f"ds_write_b64 v21, v[{G0}:{G0+1}] offset:{L_GATE}\ns_waitcnt lgkmcnt(0)")
    A("L_x1:\ns_barrier")
    if stamps: A("s_branch L_x2")
    A("s_endpgm")
    A(";NEWBLOCK")
    A("L_kv2:")
    stamp(4)
    poll2("q",PA,PB if pb<17 else None,S+4,after('PA1'),after('PB1') if pb<17 else 0,qissue)
    stamp(5)
    vload()
    red8regs(PA,S)
    A(f"""v_cvt_pk_bf16_f32 v{S}, v{S}, v{S}
    ds_write_b16 v177, v{S} offset:{L_QB}
    ds_read_b128 v[12:15], v178 offset:{L_QB}
    s_waitcnt lgkmcnt(0)""")
    vload()
    for oc in range(16): A(f"v_dot2_f32_bf16 v{S+oc}, v{K0+4*oc}, v12, 0")
    for d in range(1,4):
        for oc in range(16): A(f"v_dot2c_f32_bf16 v{S+oc}, v{K0+4*oc+d}, v{12+d}")
        if d!=2: vload()
    T=PA
    for k in range(8): A(f"v_add_f32_dpp v{T+k}, v{S+k}, v{S+k} {HM} row_mask:0xf bank_mask:0x5")
    for k in range(8): A(f"v_add_f32_dpp v{T+k}, v{S+8+k}, v{S+8+k} {HM} row_mask:0xf bank_mask:0xa")
    for m in (X1,X2):
        for k in range(8): A(f"v_add_f32_dpp v{T+k}, v{T+k}, v{T+k} {m}{DPP}")
    A(f"""s_mov_b32 exec_lo, 0x11111111
    s_mov_b32 exec_hi, 0x11111111
    ds_write_b128 v179, v[{T}:{T+3}]
    ds_write_b128 v179, v[{T+4}:{T+7}] offset:16
    s_mov_b64 exec, 1
    ds_add_u32 v183, v184 offset:{L_CNT}
    s_mov_b64 exec, -1""")
    stamp(6)
    vload()
    A("L_sc:")
    A(f"""ds_read_b32 v16, v183 offset:{L_CNT}
    ds_read_b64 v[18:19], v180
    ds_read_b64 v[20:21], v180 offset:512
    ds_read_b64 v[22:23], v180 offset:1024
    s_waitcnt lgkmcnt(3)
    v_readfirstlane_b32 s8, v16
    s_cmp_lt_u32 s8, 3
    s_waitcnt lgkmcnt(0)
    s_cbranch_scc1 L_sc""")
    stamp(7)
    vload()
    A(f"""v_add_f32 v18, v18, v20
    v_add_f32 v19, v19, v21
    v_add_f32 v18, v18, v22
    v_add_f32 v19, v19, v23
    v_cvt_pk_bf16_f32 v18, v18, v19
    v_and_b32 v19, 0xffff0000, v18
    v_lshlrev_b32 v18, 16, v18
    v_mul_f32 v18, {hex(SCALE)}, v18
    v_mul_f32 v19, {hex(SCALE)}, v19
    v_cvt_pk_bf16_f32 v18, v18, v19
    v_and_b32 v19, 0xffff0000, v18
    v_lshlrev_b32 v18, 16, v18
    v_mul_f32 v18, {hex(LOG2E)}, v18
    v_mul_f32 v19, {hex(LOG2E)}, v19
    v_max_f32 v188, v18, v19""")
    allred8("v_max_f32",[188]); allred_oct("v_max_f32",188,20)
    vload()
    A(f"""v_sub_f32 v18, v18, v188
    v_sub_f32 v19, v19, v188
    v_exp_f32 v18, v18
    v_exp_f32 v19, v19
    v_cvt_pk_bf16_f32 v20, v18, v18
    v_cvt_pk_bf16_f32 v21, v19, v19
    ds_write_b64 v181, v[20:21] offset:{L_PD}""")
    for j in range(4): A(f"ds_read_b128 v[{S+4*j}:{S+4*j+3}], v182 offset:{L_PD+16*j}")
    A("v_add_f32 v189, v18, v19")
    allred8("v_add_f32",[189]); allred_oct("v_add_f32",189,20)
    while vnext[0]<16: vload(); A("s_nop 0")
    if b1at>15:
        stamp(3)
        A("s_barrier")
    A("v_cndmask_b32 v190, v188, v189, s[52:53]\nv_mov_b32 v191, s42")
    A("s_waitcnt lgkmcnt(0)")
    stamp(8)
    for oc in range(17):
        if oc<16:
            for d in range(4): A(f"v_and_b32 v{K0+4*oc+d}, v{S+oc}, v{8+d}")
        if 1<=oc<=8:
            k=oc-1; n=after('V%d'%k)
            if n<after('PA1'): A(f"s_waitcnt vmcnt({n})")
            A(f"v_mfma_f32_16x16x32_bf16 v[12:15], v[{K0+4*k}:{K0+4*k+3}], v[{V0+4*k}:{V0+4*k+3}], {'0' if k==0 else 'v[12:15]'}")
    for k in range(8,16):
        n=after('V%d'%k)
        if n<after('PA1'): A(f"s_waitcnt vmcnt({n})")
        A(f"v_mfma_f32_16x16x32_bf16 v[12:15], v[{K0+4*k}:{K0+4*k+3}], v[{V0+4*k}:{V0+4*k+3}], v[12:15]")
    stamp(9)
    for k in range(4): A(f"v_permlane32_swap_b32 v{12+k}, v{PA+k}")
    for k in range(4): A(f"v_add_f32_dpp v{12+k}, v{PA+k}, v{12+k} row_ror:8{DPP}")
    A("v_cvt_pk_bf16_f32 v188, v12, v13\nv_cvt_pk_bf16_f32 v189, v14, v15\ns_mov_b64 exec, 0x00ff00ff")
    if fast:
        A("s_cmp_lg_u64 s[48:49], 0\ns_cbranch_scc1 L_slowpub")
        A("global_store_dwordx4 v6, v[188:191], s[40:41]")
    else:
        A("global_store_dwordx4 v6, v[188:191], s[40:41] sc1")
    A("L_pubdone:")
    stamp(10)
    A("s_barrier")
    if stamps: A("s_waitcnt vmcnt(0)"); stamp(15)
    if stamps: A("s_branch L_fin\nL_x2:\ns_barrier")
    A("L_fin:")
    stamp(14)
    if stamps:
        A("s_mov_b64 exec, -1")
        A("s_waitcnt lgkmcnt(0)")
        if probe is not None:
            lo,hi,st,sign,wgsel=probe
            A("v_mov_b32 v251, 0\ns_or_b32 s98, s2, s3\ns_cbranch_scc1 L_dbgd\nv_mov_b32 v250, s60\nglobal_store_dword v251, v250, s[38:39] sc1\nL_dbgd:")
            A(f"s_cmp_lt_u32 s3, {lo}\ns_cbranch_scc1 L_end\ns_cmp_gt_u32 s3, {hi}\ns_cbranch_scc1 L_end")
            if wgsel is not None: A(f"s_cmp_lg_u32 s2, {wgsel}\ns_cbranch_scc1 L_end")
            A(f"L_dbgw:\ns_sleep 32\ns_memrealtime s[96:97]\ns_waitcnt lgkmcnt(0)\ns_sub_u32 s96, s96, s60\ns_cmp_lt_u32 s96, 3500\ns_cbranch_scc1 L_dbgw")
            A("global_load_dword v250, v251, s[38:39] sc1\ns_waitcnt vmcnt(0)\nv_readfirstlane_b32 s95, v250")
            if cyc: A("s_sub_u32 s94, s90, s92\ns_mul_i32 s94, s94, 10\ns_add_u32 s94, s94, 6000")
            else: A(f"s_sub_u32 s94, s{60+2*st}, s95\ns_mul_i32 s94, s94, {10*sign}\ns_add_u32 s94, s94, {6000 if sign>=0 else 30000}")
            A(f"s_min_u32 s94, s94, 50000")
            A(f"L_dbgx:\ns_sleep 2\ns_memrealtime s[96:97]\ns_waitcnt lgkmcnt(0)\ns_sub_u32 s96, s96, s95\ns_cmp_lt_u32 s96, s94\ns_cbranch_scc1 L_dbgx")
        else:
            A("L_dbgw:\ns_sleep 32\ns_memrealtime s[96:97]\ns_waitcnt lgkmcnt(0)\ns_sub_u32 s96, s96, s60\ns_cmp_lt_u32 s96, 1500\ns_cbranch_scc1 L_dbgw")
            for i in range(16): A(f"v_writelane_b32 v250, s{60+2*i}, {i}")
            A("v_writelane_b32 v250, s46, 16")
            A("v_writelane_b32 v250, s43, 17")
            A("s_getreg_b32 s98, hwreg(HW_REG_HW_ID)")
            A("v_writelane_b32 v250, s98, 18")
            A("s_lshl_b32 s98, s2, 3\ns_add_u32 s98, s98, s3\ns_lshl_b32 s98, s98, 8")
            A(f"s_add_u32 s98, s98, {STAMP_BASE}")
            A("v_lshl_add_u32 v251, v0, 2, s98")
            A("global_store_dword v251, v250, s[40:41]")
    A("L_end:")
    A("s_endpgm")
    if fast:
        A("L_slowpub:")
        A("global_store_dwordx4 v6, v[188:191], s[40:41] sc1\ns_branch L_pubdone")
    if noout: A.L[:]=[("    s_nop 0" if "global_store_short" in l else l) for l in A.L]
    body,n=pad(A.L)
    if warm:
        body,pads=place_pads(body, entry_off=0, verbose=verbose, target=(None if chain else (lambda k,N: "L_back" if k<3 else "L_back2")))
        assert len(pads)<=8
        i=body.index("L_back2:")
        for k in range(len(pads),8): body.insert(i, f"L_t{k}:")
    nv = 256 if stamps else 200
    hdr=open(f"cdna_kernels/{NAME}.s.ref").read().split("; Override launch")[0] if header else ""
    hdr+=DOC if header else ""
    txt=hdr+f"""; @launch grid=(256,1,1) block=(512,1,1) lds={LDS}
.amdgcn_target "amdgcn-amd-amdhsa--gfx950"
.text
.globl {kname}
.p2align 12
.fill 832, 4, 0xbf800000
.p2align 8
.type {kname},@function
"""+"\n".join(body)+f"""
.section .rodata,"a"
.p2align 6
.amdhsa_kernel {kname}
  .amdhsa_next_free_vgpr {nv}
  .amdhsa_next_free_sgpr 102
  .amdhsa_accum_offset {nv}
  .amdhsa_group_segment_fixed_size 0
  .amdhsa_kernarg_size 104
  .amdhsa_user_sgpr_count 2
  .amdhsa_user_sgpr_kernarg_segment_ptr 1
  .amdhsa_system_sgpr_workgroup_id_x 1
  .amdhsa_float_denorm_mode_32 3
.end_amdhsa_kernel
"""
    open(path,"w").write(txt)
    return n
if __name__=="__main__":
    from build import build
    p=f"h21.s"
    print("nops:",gen(p, verbose=True))
    print(build(p, NAME+"_kernel"))
```
